```python
import torch

def _softmax(x, axis=-1):
    return torch.softmax(x, dim=axis)
def _gelu(x):
    return torch.nn.functional.gelu(x, approximate="tanh")
def _silu(x):
    return torch.nn.functional.silu(x)
def _sigmoid(x):
    return torch.sigmoid(x)
def _layernorm(x, axis=-1, eps=1e-5):
    m = x.mean(dim=axis, keepdim=True)
    v = x.var(dim=axis, keepdim=True, unbiased=False)
    return (x - m) / torch.sqrt(v + eps)
def _scatter_add(tgt, idx, src, axis=0):
    return tgt.clone().index_add_(axis, idx, src)
def _segment_sum(src, seg, n):
    out = torch.zeros((n,) + src.shape[1:], dtype=src.dtype)
    return out.index_add_(0, seg, src)
def _pad(x, pw):
    flat = tuple(v for pair in reversed(pw) for v in pair)
    return torch.nn.functional.pad(x, flat)

kernel_name = 'recurrent_scan__ssm_conv_h3__swiglu_ffn__prompt'

def setup_inputs():

    _w = (lambda a: (lambda t: t.to(torch.bfloat16) if t.is_floating_point() else t)(torch.as_tensor(a)))
    def _A_setup():
        B, S, D = 1, 2048, 512
        ks = 4
        return {
            "q": _w((lambda *s: torch.randn(*s, dtype=torch.bfloat16) * 0.05)(B, S, D)),
            "k": _w((lambda *s: torch.randn(*s, dtype=torch.bfloat16) * 0.2)(B, S, D)),
            "v": _w((lambda *s: torch.randn(*s, dtype=torch.bfloat16) * 0.2)(B, S, D)),
            "shift_k": _w((lambda *s: torch.randn(*s, dtype=torch.bfloat16) * 0.2)(D, ks) * 0.5),
            "ssm_k": _w((lambda *s: torch.randn(*s, dtype=torch.bfloat16) * 0.2)(D, S) * (1.0 / S ** 0.5)),
            "ssm_D": _w((lambda *s: torch.randn(*s, dtype=torch.bfloat16) * 0.2)(D)),
        }
    _A_in = _A_setup()

    def _B_setup():
        B, S, D, F = 1, 2048, 512, 1792
        return {
            "x": _w((lambda *s: torch.randn(*s, dtype=torch.bfloat16) * 0.05)(B, S, D)),
            "w_gate": _w((lambda *s: torch.randn(*s, dtype=torch.bfloat16) * 0.1)(D, F)),
            "w_up": _w((lambda *s: torch.randn(*s, dtype=torch.bfloat16) * 0.1)(D, F)),
            "w_down": _w((lambda *s: torch.randn(*s, dtype=torch.bfloat16) * 0.1)(F, D)),
        }
    _B_in = _B_setup()

    return {
        "A_q": _A_in["q"],
        "A_k": _A_in["k"],
        "A_v": _A_in["v"],
        "A_shift_k": _A_in["shift_k"],
        "A_ssm_k": _A_in["ssm_k"],
        "A_ssm_D": _A_in["ssm_D"],
        "B_x": _B_in["x"],
        "B_w_gate": _B_in["w_gate"],
        "B_w_up": _B_in["w_up"],
        "B_w_down": _B_in["w_down"],
    }

def reference(A_q, A_k, A_v, A_shift_k, A_ssm_k, A_ssm_D, B_x, B_w_gate, B_w_up, B_w_down):
    def _A_ref(q, k, v, shift_k, ssm_k, ssm_D):
        B, S, D = q.shape
        ks = shift_k.shape[-1]
        k_pad = _pad(k, ((0, 0), (ks - 1, 0), (0, 0)))
        k_shift = torch.zeros_like(k)
        for t in range(ks):
            k_shift = k_shift + k_pad[:, t:t + S, :] * shift_k[:, ks - 1 - t][None, None, :]
        kv = k_shift * v
        L = 2 * S
        kv_pad = _pad(kv, ((0, 0), (0, S), (0, 0)))
        kf_pad = _pad(ssm_k, ((0, 0), (0, S)))
        kv_f = (lambda x, axes=(-2,-1): torch.fft.rfft2(x.float(), dim=axes))(kv_pad[:, None, :, :], axes=(1, 2))
        kf_f = (lambda x, axes=(-2,-1): torch.fft.rfft2(x.float(), dim=axes))(kf_pad[:, None, :], axes=(1, 2))
        kf_f = (lambda x, *d: x.permute(*d))(kf_f, 1, 2, 0)
        y_f = kv_f * kf_f[None, :, :, :]
        y = (lambda x, s, axes=(-2,-1): torch.fft.irfft2(x, s=s, dim=axes).to(torch.bfloat16))(y_f, (1, L), axes=(1, 2))[:, 0, :S, :]
        y = y + kv * ssm_D[None, None, :]
        return q * y

    def _B_ref(x, w_gate, w_up, w_down):
        g = _silu(x @ w_gate)
        u = x @ w_up
        return (g * u) @ w_down

    x = A_q
    xn = _layernorm(x, axis=-1)
    s = _A_ref(xn, A_k, A_v, A_shift_k, A_ssm_k, A_ssm_D)
    g = _silu(_B_ref(xn, B_w_gate, B_w_up, B_w_down))
    return x + s * g
```

```python
import re

REG_RE = re.compile(r'^(-?)(?:abs\()?([vas])(?:(\d+)|\[(\d+):(\d+)\])\)?$')


def regs_of(tok):
    tok = tok.strip()
    if tok == 'vcc':
        return {('s', 'vcc')}
    if tok == 'exec':
        return {('s', 'exec')}
    if tok == 'm0':
        return {('s', 'm0')}
    m = REG_RE.match(tok)
    if not m:
        return set()
    k = m.group(2)
    if m.group(3) is not None:
        return {(k, int(m.group(3)))}
    return {(k, i) for i in range(int(m.group(4)), int(m.group(5)) + 1)}


TRANS = ('v_exp_f32', 'v_log_f32', 'v_rcp_f32', 'v_rsq_f32', 'v_sqrt_f32', 'v_sin_f32', 'v_cos_f32')


class I:
    __slots__ = ('text', 'op', 'kind', 'dst', 'src', 'tag', 'wait', 'srcc', 'passes', 'wide', 'dpp', 'ops')

    def __init__(self, text, tag=None, wait=None):
        self.text = text
        self.tag = tag
        self.wait = wait
        self.dst = set()
        self.src = set()
        self.srcc = set()
        self.passes = 0
        self.wide = False
        self.dpp = False
        self.ops = []
        t = text.split(';')[0].strip()
        if wait is not None:
            self.op = 'WAIT'
            self.kind = 'wait'
            return
        if t.endswith(':') or t.startswith('.') or t == '':
            self.op = t
            self.kind = 'label' if t.endswith(':') else 'dir'
            return
        parts = t.split(None, 1)
        op = parts[0]
        self.op = op
        rest = parts[1] if len(parts) > 1 else ''
        toks = []
        cur = ''
        depth = 0
        for ch in rest:
            if ch in '[(':
                depth += 1
            if ch in '])':
                depth -= 1
            if ch == ',' and depth == 0:
                toks.append(cur.strip())
                cur = ''
            else:
                cur += ch
        if cur.strip():
            toks.append(cur.strip())
        mods = ''
        if toks:
            last = toks[-1].split()
            toks[-1] = last[0]
            mods = ' '.join(last[1:])
        self.ops = toks
        R = [regs_of(x) for x in toks]
        base = op.replace('_e32', '').replace('_e64', '').replace('_dpp', '').replace('_sdwa', '')
        if op.startswith('v_mfma'):
            self.kind = 'mfma'
            self.dst = R[0]
            self.src = R[1] | R[2] | R[3]
            self.srcc = R[3]
            self.passes = 8 if '32x32x16' in op else 4
        elif op.startswith('ds_read') or op.startswith('ds_bpermute') or op.startswith('ds_swizzle'):
            self.kind = 'lds'
            self.dst = R[0]
            self.src = set().union(*R[1:])
        elif op.startswith('ds_write'):
            self.kind = 'lds'
            self.src = set().union(*R)
        elif op.startswith('buffer_load') or op.startswith('global_load'):
            self.kind = 'vmem'
            if ' lds' in (' ' + mods) or 'load_lds' in op:
                self.src = set().union(*R) | {('s', 'm0')}
                self.kind = 'dma'
            else:
                self.dst = R[0]
                self.src = set().union(*R[1:])
        elif op.startswith('buffer_store') or op.startswith('global_store') or 'atomic' in op:
            self.kind = 'vmem'
            self.src = set().union(*R)
            self.wide = op.endswith('x4') or op.endswith('x3')
        elif op.startswith('s_load') or op.startswith('s_memtime') or op.startswith('s_memrealtime'):
            self.kind = 'smem'
            self.dst = R[0]
            self.src = set().union(*R[1:]) if len(R) > 1 else set()
        elif op in ('s_waitcnt', 's_nop', 's_barrier', 's_sleep', 's_setprio', 's_endpgm') or op.startswith('s_cbranch') or op == 's_branch':
            self.kind = 'sopp'
        elif op.startswith('s_'):
            self.kind = 'salu'
            if op.startswith('s_cmp'):
                self.src = set().union(*R)
            else:
                self.dst = R[0]
                self.src = set().union(*R[1:]) if len(R) > 1 else set()
        elif op.startswith('v_'):
            self.kind = 'valu'
            if base.startswith('v_permlane') or base == 'v_swap_b32':
                self.dst = R[0] | R[1]
                self.src = R[0] | R[1]
            elif base in ('v_add_co_u32', 'v_addc_co_u32', 'v_sub_co_u32'):
                self.dst = R[0] | R[1]
                self.src = set().union(*R[2:])
            else:
                self.dst = R[0]
                self.src = set().union(*R[1:]) if len(R) > 1 else set()
                if base in ('v_fmac_f32', 'v_dot2c_f32_bf16'):
                    self.src |= R[0]
                if base == 'v_cndmask_b32' and len(toks) == 3:
                    self.src |= {('s', 'vcc')}
            if '_dpp' in op or 'row_' in mods or 'quad_perm' in mods:
                self.dpp = True
                self.src |= R[0]
        else:
            raise ValueError('unknown instr: ' + text)

    def is_trans(self):
        return self.op.replace('_e32', '').replace('_e64', '') in TRANS

    def is_dot(self):
        return self.op.startswith('v_dot2')


def WAIT(*tags):
    return I('', wait=list(tags))


class Stream:
    def __init__(self):
        self.l = []

    def __call__(self, text, tag=None):
        for line in text.split('\n'):
            line = line.strip()
            if not line:
                continue
            self.l.append(I(line, tag=tag))
        return self

    def wait(self, *tags):
        self.l.append(WAIT(*tags))

    def add(self, items):
        if isinstance(items, Stream):
            items = items.l
        for it in items:
            if isinstance(it, str):
                self(it)
            else:
                self.l.append(it)


def resolve_waits(instrs, verbose=False):
    out = []
    vm = []
    lg = []
    smem = []

    def need(queue, pred):
        for idx in range(len(queue) - 1, -1, -1):
            if pred(queue[idx]):
                return len(queue) - 1 - idx
        return None

    for ins in instrs:
        nv = nl = None
        if ins.kind == 'wait':
            tags = set(ins.wait)
            if 'ALL' in tags:
                nv = 0 if vm else None
                nl = 0 if (lg or smem) else None
            else:
                if 'LGKM0' in tags and (lg or smem):
                    nl = 0
                if 'VM0' in tags and vm:
                    nv = 0
                a = need(vm, lambda e: e[1] in tags)
                if a is not None:
                    nv = a if nv is None else min(nv, a)
                a = need(lg, lambda e: e[1] in tags)
                if a is not None:
                    nl = a if nl is None else min(nl, a)
        elif ins.kind not in ('label', 'dir'):
            touch = ins.src | ins.dst
            if touch:
                nv = need(vm, lambda e: e[0] & touch)
                nl = need(lg, lambda e: e[0] & touch)
                if any(e & touch for e in smem):
                    nl = 0
        if nv is not None or nl is not None:
            parts = []
            if nv is not None:
                nv = min(nv, 63)
                parts.append(f'vmcnt({nv})')
                del vm[:max(0, len(vm) - nv)]
            if nl is not None:
                nl = min(nl, 15)
                parts.append(f'lgkmcnt({nl})')
                del lg[:max(0, len(lg) - nl)]
                if nl == 0:
                    smem.clear()
            out.append(I('s_waitcnt ' + ' '.join(parts)))
        if ins.kind == 'wait':
            continue
        if ins.op == 's_waitcnt':
            m = re.search(r'vmcnt\((\d+)\)', ins.text)
            if m:
                del vm[:max(0, len(vm) - int(m.group(1)))]
            m = re.search(r'lgkmcnt\((\d+)\)', ins.text)
            if m:
                n = int(m.group(1))
                del lg[:max(0, len(lg) - n)]
                if n == 0:
                    smem.clear()
        out.append(ins)
        if ins.kind in ('vmem', 'dma'):
            vm.append((ins.dst, ins.tag))
            assert len(vm) <= 63 or True
        elif ins.kind == 'lds':
            lg.append((ins.dst, ins.tag))
        elif ins.kind == 'smem':
            if ins.op.startswith('s_load'):
                smem.append(ins.dst)
            else:
                smem.append(ins.dst)
    return out


def states(ins):
    if ins.kind in ('label', 'dir'):
        return 0
    if ins.op == 's_nop':
        return int(ins.ops[0]) + 1
    return 1


def vg(s):
    return {r for r in s if r[0] in 'va'}


def sg(s):
    return {r for r in s if r[0] == 's'}


def required(p, c):
    n = 0
    if p.kind == 'valu':
        w = vg(p.dst)
        if w:
            if c.kind == 'mfma' and (w & c.src):
                n = max(n, 2)
            if c.kind == 'valu':
                if c.dpp and (w & c.src):
                    n = max(n, 2)
                if c.op.startswith('v_permlane') and (w & c.src):
                    n = max(n, 2)
                if c.op.startswith('v_readlane') or c.op.startswith('v_readfirstlane'):
                    if w & c.src:
                        n = max(n, 1)
                if p.is_trans() and (w & c.src) and not c.is_trans():
                    n = max(n, 1)
                if p.is_trans() and (w & c.src) and c.is_trans():
                    n = max(n, 1)
            if p.is_trans() and c.kind in ('vmem', 'lds', 'dma') and (w & c.src):
                n = max(n, 1)
            if p.is_dot():
                if c.is_dot() and c.op == p.op:
                    ab = set()
                    for t in c.ops[1:3]:
                        ab |= regs_of(t)
                    if w & ab:
                        n = max(n, 3)
                elif w & (c.src | c.dst):
                    n = max(n, 3)
        ws = sg(p.dst)
        if ws:
            if c.kind == 'valu' and (ws & c.src):
                n = max(n, 2)
            if c.kind in ('vmem', 'dma') and (ws & c.src):
                n = max(n, 5)
            if c.kind in ('salu', 'smem') and (ws & c.src):
                n = max(n, 1)
            if c.op.startswith('s_cbranch_vcc') and ('s', 'vcc') in ws:
                n = max(n, 1)
    if p.kind == 'mfma':
        d = p.dst
        big = 12 if p.passes == 8 else 8
        if c.kind == 'mfma':
            ab = c.src - c.srcc
            if d & ab:
                n = max(n, big)
            if d & c.srcc:
                if not (c.srcc == d and c.passes == p.passes):
                    n = max(n, 10 if p.passes == 8 else 6)
            if (d & c.dst) and not (d & c.srcc):
                n = max(n, big)
        elif c.kind in ('valu', 'vmem', 'lds', 'dma'):
            if d & (c.src | c.dst):
                n = max(n, big)
            if c.kind == 'valu' and (p.srcc & c.dst):
                n = max(n, 7 if p.passes == 8 else 3)
    if p.kind == 'salu' and ('s', 'm0') in p.dst and c.kind == 'dma':
        n = max(n, 1)
    if p.kind == 'vmem' and p.wide:
        data = regs_of(p.ops[0]) if p.op.startswith('buffer') else regs_of(p.ops[1])
        if data & c.dst:
            n = max(n, 2 if c.kind == 'valu' else 1)
    return n


def insert_nops(instrs):
    out = []
    cnt = 0
    for c in instrs:
        if c.kind not in ('label', 'dir'):
            dist = 0
            add = 0
            for p in reversed(out):
                if dist >= 12:
                    break
                if p.kind in ('label', 'dir'):
                    continue
                r = required(p, c)
                if r > dist:
                    add = max(add, r - dist)
                dist += states(p)
            if add:
                out.append(I(f's_nop {add - 1}'))
                cnt += add
        out.append(c)
    return out, cnt


def render(instrs):
    lines = []
    for i in instrs:
        if i.kind in ('label', 'dir'):
            lines.append(i.text)
        else:
            lines.append('    ' + i.text)
    return '\n'.join(lines) + '\n'


def weave(mains, gaps):
    out = []
    out.extend(gaps.get(-1, []))
    for i, m in enumerate(mains):
        out.append(m)
        out.extend(gaps.get(i, []))
    return out


def spread(gaps, items, lo, hi):
    n = len(items)
    if n == 0:
        return
    span = hi - lo + 1
    for j, it in enumerate(items):
        g = lo + (j * span) // n
        gaps.setdefault(g, [])
        if isinstance(it, list):
            gaps[g].extend(it)
        else:
            gaps[g].append(it)
```

```python
import sys, os
sys.path.insert(0, os.path.dirname(os.path.abspath(__file__)))
from asmlib import *

NAME = 'recurrent_scan__ssm_conv_h3__swiglu_ffn__prompt'

WSBASE = 0x8000000
WSSIZE = 0x1000000
EPOCH = 0x0
FLAG_S = 0x1000
FLAG_P = 0x4000
FLAG_Y = 0x10000
FLAG_H = 0x20000
STATS = 0x40000
CS = 0x48000
STAMP = 0x80000
UT = 0x100000
YT = 0x300000
HH = 0x600000

SLOT = [0, 49152, 98304]
PK = 98304
PV = PK + 9216
PO = PV + 8192
WD_A = 98304
WD_B = 0
CV = 49152
CVCH = 21760
CVR = 16640
RED = 49152
YS = 49152 + 32768
SCS = 0

sW, sXCD, sJ, sTAG, sT0 = 3, 4, 5, 6, 7
SRD_X, SRD_K, SRD_V, SRD_W, SRD_SSM, SRD_DN, SRD_OUT, SRD_WS = 36, 40, 44, 48, 52, 56, 60, 64
sA, sB, sROT = 68, 69, 70
sRB2, sDB, sC0 = 71, 72, 73
sT1, sT2, sT3, sT4 = 74, 75, 76, 77
sSPIN = 78
sM0W, sM0X, sMASK = 79, 80, 81
sSOW, sSOX = 82, 83
sHB = 84
sSTEP = 86
sWDA, sWDB = 8, 9
sHL = 11
sSO2 = 12
sST = 20


def srd(r):
    return f's[{r}:{r + 3}]'


class Opt:
    stamps = False
    stop = None
    ld_in = ''
    out_st = ''
    D = 5
    G = 3
    NB = 10


def gen(opt):
    stamps = []
    SP = [26, 28]

    def raw(text):
        it = I(text)
        it.src = set()
        it.dst = set()
        return it

    def stamp(st, name, idx=None):
        if not opt.stamps:
            return
        if idx is None:
            idx = len(stamps)
            stamps.append(name)
        if idx == 0:
            st.add([raw('s_memrealtime s[100:101]')])
            return
        prev = 100 if idx == 1 else SP[(idx - 1) & 1]
        st.add([raw(f'v_writelane_b32 v2, s{prev}, {idx - 1}'), raw(f's_memrealtime s[{SP[idx & 1]}:{SP[idx & 1] + 1}]')])

    P0 = Stream()
    e = P0
    e(f'''
    s_cmp_ge_u32 s2, 256
    s_cbranch_scc1 L_end
    ''')
    stamp(e, 'start')
    e(f'''
    s_load_dwordx16 s[8:23], s[0:1], 0
    s_load_dwordx8 s[24:31], s[0:1], 64
    s_load_dwordx2 s[32:33], s[0:1], 96
    v_lshrrev_b32 v2, 6, v0
    v_and_b32 v1, 63, v0
    s_and_b32 s{sXCD}, s2, 7
    v_readfirstlane_b32 s{sW}, v2
    s_lshr_b32 s{sJ}, s2, 3
    v_lshrrev_b32 v3, 4, v1
    v_and_b32 v4, 15, v1
    v_lshrrev_b32 v5, 3, v1
    v_and_b32 v6, 7, v1
    v_lshrrev_b32 v7, 2, v4
    v_and_b32 v8, 3, v1
    s_mov_b32 s{sMASK}, 0xffff
    ''')
    e(f'''
    v_lshrrev_b32 v9, 1, v6
    v_and_b32 v10, 1, v3
    v_xor_b32 v9, v9, v10
    v_lshlrev_b32 v9, 5, v9
    v_and_b32 v10, 1, v6
    v_lshl_add_u32 v9, v10, 4, v9
    v_lshl_add_u32 v9, v5, 10, v9
    s_lshl_b32 s{sT0}, s{sXCD}, 7
    v_add_u32 v9, s{sT0}, v9
    s_and_b32 s{sT1}, s{sW}, 1
    s_lshl_b32 s{sT1}, s{sT1}, 6
    v_xor_b32 v10, s{sT1}, v9
    v_xor_b32 v11, 64, v10
    s_lshl_b32 s{sT2}, s{sJ}, 16
    s_lshl_b32 s{sT3}, s{sW}, 14
    s_add_u32 s{sT3}, s{sT3}, s{sT2}
    s_sub_u32 s{sT4}, s{sT2}, 8192
    s_cmp_eq_u32 s{sJ}, 0
    s_cselect_b32 s{sT4}, 0x80000000, s{sT4}
    v_add_u32 v12, s{sT4}, v9
    s_lshl_b32 s{sT0}, s{sW}, 11
    ''')
    e('s_waitcnt lgkmcnt(0)')

    def mk_srd(r, p, size):
        e(f's_mov_b32 s{r}, s{p}\ns_mov_b32 s{r + 1}, s{p + 1}\ns_mov_b32 s{r + 2}, {size}\ns_mov_b32 s{r + 3}, 0x20000')
    mk_srd(SRD_K, 10, 0x200000)
    mk_srd(SRD_V, 12, 0x200000)
    e(f'''
    s_cmp_lg_u32 s{sW}, 0
    s_cbranch_scc1 L_nohalo
    s_mov_b32 m0, {PK}
    s_nop 0
    buffer_load_dwordx4 v12, {srd(SRD_K)}, 0 offen {opt.ld_in} lds
L_nohalo:
    ''')
    e(f's_add_u32 m0, s{sT0}, {PK + 1024}')
    e(f's_add_u32 s{sT2}, s{sT3}, 8192')
    e(f'buffer_load_dwordx4 v10, {srd(SRD_K)}, s{sT3} offen {opt.ld_in} lds', tag='pk')
    e(f's_add_u32 m0, s{sT0}, {PK + 2048}')
    mk_srd(SRD_X, 8, 0x200000)
    e(f'buffer_load_dwordx4 v11, {srd(SRD_K)}, s{sT2} offen {opt.ld_in} lds', tag='pk')
    e(f's_add_u32 m0, s{sT0}, {PV}')
    e(f's_add_u32 s{SRD_WS}, s32, {WSBASE}\ns_addc_u32 s{SRD_WS + 1}, s33, 0\ns_mov_b32 s{SRD_WS + 2}, {WSSIZE}\ns_mov_b32 s{SRD_WS + 3}, 0x20000')
    e(f'buffer_load_dwordx4 v10, {srd(SRD_V)}, s{sT3} offen {opt.ld_in} lds', tag='pk')
    e(f's_add_u32 m0, s{sT0}, {PV + 1024}')
    e(f'''
    s_lshl_b32 s{sT1}, s{sXCD}, 9
    s_lshl_b32 s{sT4}, s{sW}, 7
    s_add_u32 s{sT1}, s{sT1}, s{sT4}
    v_lshl_add_u32 v13, v4, 3, s{sT1}
    ''')
    e(f'buffer_load_dwordx4 v10, {srd(SRD_V)}, s{sT2} offen {opt.ld_in} lds', tag='pk')
    e('global_load_dwordx2 v[14:15], v13, s[14:15]')
    e('v_mov_b32 v16, 0')
    e(f'buffer_load_dword v17, v16, {srd(SRD_WS)}, 0 offen sc1')
    e(f'''
    s_and_b32 s{sT0}, s{sW}, 1
    s_cmp_eq_u32 s{sT0}, 0
    s_cselect_b32 s{SRD_W}, s22, s24
    s_cselect_b32 s{SRD_W + 1}, s23, s25
    s_mov_b32 s{SRD_W + 2}, {512 * 3584}
    s_mov_b32 s{SRD_W + 3}, 0x20000
    s_and_b32 s{sT0}, s{sXCD}, 3
    s_lshr_b32 s{sT1}, s{sXCD}, 2
    s_and_b32 s{sT2}, s{sJ}, 3
    s_lshr_b32 s{sT3}, s{sJ}, 2
    s_lshl_b32 s{sB}, s{sT0}, 2
    s_add_u32 s{sB}, s{sB}, s{sT2}
    s_mul_i32 s{sA}, s{sT1}, 7
    s_add_u32 s{sA}, s{sA}, s{sT3}
    s_lshl_b32 s{sROT}, s{sT2}, 1
    s_add_u32 s{sROT}, s{sROT}, s{sT3}
    s_and_b32 s{sROT}, s{sROT}, 7
    s_lshl_b32 s{sRB2}, s{sXCD}, 2
    s_add_u32 s{sRB2}, s{sRB2}, s{sT2}
    s_mov_b32 s{sDB}, s{sT3}
    s_lshl_b32 s{sC0}, s{sXCD}, 6
    s_lshl_b32 s{sT4}, s{sJ}, 1
    s_add_u32 s{sC0}, s{sC0}, s{sT4}
    s_cmp_ge_u32 s{sJ}, 28
    s_cbranch_scc1 L_srole
    ''')

    def late_srds(e):
        e(f's_mov_b32 s{SRD_SSM}, s16\ns_mov_b32 s{SRD_SSM + 1}, s17\ns_mov_b32 s{SRD_SSM + 2}, 0x200000\ns_mov_b32 s{SRD_SSM + 3}, 0x20000')
        e(f's_mov_b32 s{SRD_DN}, s26\ns_mov_b32 s{SRD_DN + 1}, s27\ns_mov_b32 s{SRD_DN + 2}, {1792 * 1024}\ns_mov_b32 s{SRD_DN + 3}, 0x20000')
        e(f's_mov_b32 s{SRD_OUT}, s28\ns_mov_b32 s{SRD_OUT + 1}, s29\ns_mov_b32 s{SRD_OUT + 2}, 0x200000\ns_mov_b32 s{SRD_OUT + 3}, 0x20000')
        e(f'''
        s_mul_i32 s{sWDB}, s{sW}, 12288
        s_lshl_b32 s{sWDA}, s{sW}, 14
        s_add_u32 s{sWDA}, s{sWDA}, {WD_A}
        s_lshr_b32 s{sT0}, s{sDB}, 2
        s_mul_i32 s{sT0}, s{sT0}, 7
        s_and_b32 s{sT1}, s{sJ}, 3
        s_lshl_b32 s{sT1}, s{sT1}, 1
        s_add_u32 s{sT0}, s{sT0}, s{sT1}
        s_lshl_b32 s{sT0}, s{sT0}, 11
        ''')
        for i in range(14):
            e(f's_mov_b32 s{sSTEP + i}, s{sT0}')
            if i < 13:
                e(f's_add_u32 s{sT0}, s{sT0}, 2048\ns_cmp_eq_u32 s{sT0}, {14 * 2048}\ns_cselect_b32 s{sT0}, 0, s{sT0}')

    def code_prefetch(e, lab):
        e(f'''
        s_getpc_b64 s[34:35]
{lab}:
        s_sub_u32 s34, s34, {lab}-{NAME}_kernel
        s_subb_u32 s35, s35, 0
        v_lshlrev_b32 v18, 7, v0
        v_min_u32 v18, L_codeend-{NAME}_kernel-4, v18
        global_load_dword v19, v18, s[34:35]
        ''')

    def p_compute(e):
        e(f'''
        v_lshlrev_b32 v62, 4, v3
        v_add_u32 v62, v62, v7
        v_lshlrev_b32 v62, 7, v62
        v_lshl_add_u32 v62, v8, 3, v62
        v_lshrrev_b32 v63, 1, v7
        v_and_b32 v64, 1, v3
        v_lshl_add_u32 v63, v64, 1, v63
        v_xor_b32 v63, s{sW}, v63
        v_lshl_add_u32 v62, v63, 5, v62
        v_xor_b32 v63, 64, v62
        v_add_u32 v62, {PK}, v62
        v_add_u32 v63, {PK}, v63
        ''')
        e.wait('pk')
        e('s_barrier')
        for n in range(-1, 4):
            reg = 62 if n <= 1 else 63
            e(f'ds_read_b64_tr_b16 v[{20 + 2 * (n + 1)}:{21 + 2 * (n + 1)}], v{reg} offset:{(8 + 4 * n) * 128}')
        for n in range(4):
            e(f'ds_read_b64_tr_b16 v[{30 + 2 * n}:{31 + 2 * n}], v62 offset:{(PV - PK) + 4 * n * 128}')
        e(f'''
        v_alignbit_b32 v40, v14, v14, 16
        v_alignbit_b32 v41, v15, v15, 16
        v_and_b32 v42, 0xffff, v14
        v_bfi_b32 v43, s{sMASK}, v15, v14
        v_and_b32 v44, 0xffff0000, v15
        v_readfirstlane_b32 s{sTAG}, v17
        ''')
        e(f's_add_u32 s{sTAG}, s{sTAG}, 1')
        K = lambda n: f'v{22 + n}'
        for n in range(8):
            e(f'v_dot2_f32_bf16 v{47 + 2 * n}, {K(n)}, v40, 0')
            e(f'v_dot2_f32_bf16 v{46 + 2 * n}, {K(n)}, v42, 0')
        for n in range(8):
            e(f'v_dot2_f32_bf16 v{47 + 2 * n}, {K(n - 1)}, v41, v{47 + 2 * n}')
            e(f'v_dot2_f32_bf16 v{46 + 2 * n}, {K(n - 1)}, v43, v{46 + 2 * n}')
        for n in range(8):
            e(f'v_dot2_f32_bf16 v{46 + 2 * n}, {K(n - 2)}, v44, v{46 + 2 * n}')
        e(f'''
        s_mul_i32 s{sT0}, s{sW}, 2304
        s_add_u32 s{sT0}, s{sT0}, {PO + 96}
        v_mul_u32_u24 v64, 144, v4
        v_lshlrev_b32 v65, 5, v3
        v_sub_u32 v64, v64, v65
        v_add_u32 v64, s{sT0}, v64
        v_mul_u32_u24 v65, 144, v5
        v_lshl_add_u32 v65, v6, 4, v65
        s_sub_u32 s{sT0}, s{sT0}, 96
        v_add_u32 v65, s{sT0}, v65
        ''')
        for n in range(8):
            e(f'v_lshlrev_b32 v{66 + 2 * n}, 16, v{30 + n}')
            e(f'v_and_b32 v{67 + 2 * n}, 0xffff0000, v{30 + n}')
        for n in range(8):
            e(f'v_pk_mul_f32 v[{46 + 2 * n}:{47 + 2 * n}], v[{46 + 2 * n}:{47 + 2 * n}], v[{66 + 2 * n}:{67 + 2 * n}]')
        for m in range(8):
            n = 7 - m
            e(f'v_cvt_pk_bf16_f32 v{20 + m}, v{47 + 2 * n}, v{46 + 2 * n}')
        e('ds_write_b128 v64, v[20:23]', tag='po')
        e('ds_write_b128 v64, v[24:27] offset:16', tag='po')
        e(f'''
        s_lshl_b32 s{sT0}, s{sXCD}, 6
        s_lshl_b32 s{sT1}, s{sW}, 4
        s_add_u32 s{sT0}, s{sT0}, s{sT1}
        s_lshl_b32 s{sT0}, s{sT0}, 12
        s_lshl_b32 s{sT1}, s{sJ}, 7
        s_sub_u32 s{sT0}, s{sT0}, s{sT1}
        s_add_u32 s{sT0}, s{sT0}, {UT + 3968}
        s_add_u32 s{sT1}, s{sT0}, 32768
        v_lshlrev_b32 v66, 12, v5
        v_lshl_add_u32 v66, v6, 4, v66
        ''')
        e.wait('po')
        e('ds_read_b128 v[28:31], v65')
        e(f'ds_read_b128 v[32:35], v65 offset:{8 * 144}')
        e(f'buffer_store_dwordx4 v[28:31], v66, {srd(SRD_WS)}, s{sT0} offen sc1', tag='ust')
        e(f'buffer_store_dwordx4 v[32:35], v66, {srd(SRD_WS)}, s{sT1} offen sc1', tag='ust')

    def set_flag(e, addr_sreg, label, wave0=True):
        if wave0:
            e(f's_cmp_lg_u32 s{sW}, 0\ns_cbranch_scc1 {label}')
        e(f'''
        v_mov_b32 v10, s{addr_sreg}
        v_mov_b32 v11, s{sTAG}
        s_mov_b64 exec, 1
        buffer_store_dword v11, v10, {srd(SRD_WS)}, 0 offen sc1
        s_mov_b64 exec, -1
        ''')
        if wave0:
            e(f'{label}:')

    def untracked(stream_items):
        for it in stream_items:
            if it.kind == 'vmem':
                it.kind = 'vmem_untracked'
        return stream_items

    def flag_block(addr_sreg, label):
        s = Stream()
        set_flag(s, addr_sreg, label, True)
        return untracked(s.l)

    def poll_issue(e, vaddr, vdst):
        e(f'buffer_load_dword v{vdst}, v{vaddr}, {srd(SRD_WS)}, 0 offen sc1')

    def poll_check(e, vaddr, vdst, name):
        e(f'''
        v_cmp_ne_u32 vcc, s{sTAG}, v{vdst}
        s_cbranch_vccz L_{name}_ok
        s_mov_b32 s{sSPIN}, 0
L_{name}_spin:
        s_sleep 1
        ''')
        s = Stream()
        s(f'buffer_load_dword v{vdst}, v{vaddr}, {srd(SRD_WS)}, 0 offen sc1')
        e.add(untracked(s.l))
        s = Stream()
        s('s_waitcnt vmcnt(0)')
        s.l[0].op = 's_waitcnt_untracked'
        e.add(s.l)
        e(f'''
        v_cmp_ne_u32 vcc, s{sTAG}, v{vdst}
        s_add_u32 s{sSPIN}, s{sSPIN}, 1
        s_cmp_ge_u32 s{sSPIN}, 0x40000
        s_cbranch_scc1 L_{name}_ok
        s_cbranch_vccnz L_{name}_spin
L_{name}_ok:
        ''')

    VWD = 72
    VWR = 76

    def wd_addr_setup(e):
        e(f'''
        v_lshrrev_b32 v92, 1, v6
        v_lshrrev_b32 v93, 1, v5
        v_and_b32 v93, 3, v93
        v_xor_b32 v92, v92, v93
        v_lshlrev_b32 v92, 5, v92
        v_and_b32 v93, 1, v6
        v_lshl_add_u32 v92, v93, 4, v92
        v_lshl_add_u32 v92, v5, 10, v92
        s_mul_i32 s{sT0}, s{sW}, {448 * 1024}
        s_lshl_b32 s{sT1}, s{sDB}, 7
        s_add_u32 s{sT0}, s{sT0}, s{sT1}
        v_add_u32 v{VWD}, s{sT0}, v92
        v_add_u32 v{VWD + 1}, {7168}, v{VWD}
        v_add_u32 v{VWD + 2}, {2 * 7168}, v{VWD}
        v_add_u32 v{VWD + 3}, {3 * 7168}, v{VWD}
        v_lshrrev_b32 v92, 1, v3
        v_lshlrev_b32 v92, 4, v92
        v_and_b32 v93, 1, v3
        v_lshl_add_u32 v92, v93, 2, v92
        v_add_u32 v92, v92, v7
        v_lshlrev_b32 v92, 7, v92
        v_lshl_add_u32 v92, v8, 3, v92
        v_lshrrev_b32 v94, 1, v7
        v_lshl_add_u32 v93, v93, 1, v94
        v_lshl_add_u32 v92, v93, 5, v92
        ''')
        for dt in range(4):
            e(f'v_xor_b32 v93, {dt << 5}, v92')
            e(f'v_add_u32 v{VWR + dt}, s{sWDA}, v93')
            e(f'v_add_u32 v{VWR + 4 + dt}, s{sWDB}, v93')

    def wd_buf(i):
        i = i % 7
        if i <= 3:
            return sWDA, VWR, i * 4096
        return sWDB, VWR + 4, (i - 4) * 4096

    def wd_dma(i):
        sm, _, off = wd_buf(i)
        out = []
        for n in range(4):
            s = Stream()
            if n == 0:
                s(f's_add_u32 m0, s{sm}, {off}')
                s(f's_lshl_b32 s{sSO2}, s{sSTEP + i}, 4')
            s(f'buffer_load_dwordx4 v{VWD + n}, {srd(SRD_DN)}, s{sSO2} offen offset:{1024 * n} lds', tag=f'wd{i}')
            out.append(s.l)
        return out

    def wd_reads(i):
        _, vr, off = wd_buf(i)
        out = []
        for dt in range(4):
            for h in range(2):
                a = 16 * i + 4 * dt + 2 * h
                out.append(I(f'ds_read_b64_tr_b16 a[{a}:{a + 1}], v{vr + dt} offset:{off + 1024 * h}', tag=f'wr{i}'))
        return out

    def cv_loads(e):
        e(f'''
        s_lshr_b32 s{sT0}, s{sW}, 1
        s_add_u32 s{sT0}, s{sT0}, s{sC0}
        s_lshl_b32 s{sT1}, s{sT0}, 12
        s_and_b32 s{sT2}, s{sW}, 1
        s_lshl_b32 s{sT2}, s{sT2}, 11
        s_add_u32 s{sT2}, s{sT2}, s{sT1}
        v_lshlrev_b32 v122, 4, v1
        v_add_u32 v123, v4, v3
        v_subrev_u32 v123, 16, v123
        v_lshlrev_b32 v124, 1, v123
        v_add_u32 v124, s{sT1}, v124
        v_cmp_gt_i32 vcc, 0, v123
        v_mov_b32 v125, 0x80000000
        v_cndmask_b32 v124, v124, v125, vcc
        s_lshl_b32 s{sT0}, s{sT0}, 1
        v_mov_b32 v125, s{sT0}
        ''')
        for c in range(2):
            e(f'buffer_load_dwordx4 v[{96 + 8 * c}:{99 + 8 * c}], v122, {srd(SRD_SSM)}, s{sT2} offen offset:{1024 * c} {opt.ld_in}')
            e(f'buffer_load_dwordx4 v[{100 + 8 * c}:{103 + 8 * c}], v122, {srd(SRD_SSM)}, s{sT2} offen offset:{1024 * c + 4} {opt.ld_in}')
            e(f'buffer_load_dword v{112 + c}, v122, {srd(SRD_SSM)}, s{sT2} offen offset:{1024 * c + 20} {opt.ld_in}')
        e(f'buffer_load_ushort v120, v124, {srd(SRD_SSM)}, 0 offen')
        e(f'global_load_ushort v121, v125, s[18:19]')

    def p_poll_setup(e):
        e(f'''
        s_lshl_b32 s{sT0}, s{sXCD}, 12
        s_add_u32 s{sT0}, s{sT0}, {FLAG_P}
        v_and_b32 v126, 31, v1
        v_lshl_add_u32 v126, v126, 7, s{sT0}
        ''')
        poll_issue(e, 126, 127)

    def u_loads(e, name):
        poll_check(e, 126, 127, name)
        e(f'''
        s_lshr_b32 s{sT0}, s{sW}, 1
        s_add_u32 s{sT1}, s{sT0}, s{sC0}
        s_lshl_b32 s{sT1}, s{sT1}, 12
        s_and_b32 s{sT2}, s{sW}, 1
        s_lshl_b32 s{sT3}, s{sT2}, 11
        s_add_u32 s{sT1}, s{sT1}, s{sT3}
        s_add_u32 s{sT4}, s{sT1}, {UT}
        s_add_u32 s{sSOW}, s{sT1}, {YT}
        ''')
        e(f'buffer_load_dwordx4 v[84:87], v122, {srd(SRD_WS)}, s{sT4} offen sc1')
        e(f'buffer_load_dwordx4 v[88:91], v122, {srd(SRD_WS)}, s{sT4} offen offset:1024 sc1')

    G1 = Stream()
    e = G1
    VXD = 24 + 60
    VWDM = 88
    VRW = [96, 104]
    VRX = [112, 116]
    e(f'''
    v_lshrrev_b32 v92, 1, v4
    v_xor_b32 v92, v92, v3
    s_and_b32 s{sT0}, s{sW}, 1
    s_lshl_b32 s{sT1}, s{sT0}, 2
    v_xor_b32 v92, s{sT1}, v92
    v_lshlrev_b32 v92, 5, v92
    v_and_b32 v93, 1, v1
    v_lshl_add_u32 v92, v93, 4, v92
    v_mul_u32_u24 v93, 3584, v3
    v_add_u32 v92, v92, v93
    s_lshr_b32 s{sT1}, s{sW}, 1
    s_mul_i32 s{sT2}, s{sT1}, {32 * 3584}
    s_lshl_b32 s{sT3}, s{sA}, 8
    s_add_u32 s{sT2}, s{sT2}, s{sT3}
    v_add_u32 v{VWDM}, s{sT2}, v92
    v_add_u32 v{VWDM + 1}, {13312}, v{VWDM}
    v_add_u32 v{VWDM + 2}, {2 * 13312}, v{VWDM}
    v_add_u32 v{VWDM + 3}, {3 * 13312}, v{VWDM}
    s_lshl_b32 s{sM0W}, s{sT0}, 14
    s_lshl_b32 s{sT1}, s{sT1}, 13
    s_add_u32 s{sM0W}, s{sM0W}, s{sT1}
    s_lshl_b32 s{sM0X}, s{sW}, 12
    s_add_u32 s{sM0X}, s{sM0X}, 32768
    s_lshl_b32 s{sT0}, s{sB}, 17
    s_lshl_b32 s{sT1}, s{sW}, 15
    s_add_u32 s{sT0}, s{sT0}, s{sT1}
    v_xor_b32 v92, v6, v3
    v_lshlrev_b32 v92, 4, v92
    v_lshl_add_u32 v92, v5, 10, v92
    v_add_u32 v{VXD}, s{sT0}, v92
    v_xor_b32 v93, 64, v{VXD}
    v_add_u32 v{VXD + 1}, {7168}, v93
    v_add_u32 v{VXD + 2}, {2 * 7168}, v{VXD}
    v_add_u32 v{VXD + 3}, {3 * 7168}, v93
    ''')

    def g1_dma(i):
        slot = SLOT[i % 3]
        out = []
        for n in range(12):
            s = Stream()
            if n == 0:
                s(f's_add_u32 s{sT3}, s{sROT}, {i}\ns_and_b32 s{sT3}, s{sT3}, 7')
                s(f's_mul_i32 s{sSOW}, s{sT3}, {64 * 3584}\ns_lshl_b32 s{sSOX}, s{sT3}, 7')
                s(f's_add_u32 m0, s{sM0X}, {slot}' if slot else f's_mov_b32 m0, s{sM0X}')
            if n == 4:
                s(f's_add_u32 m0, s{sM0W}, {slot}' if slot else f's_mov_b32 m0, s{sM0W}')
            if n == 8:
                s(f's_add_u32 m0, s{sM0W}, {slot + 4096}')
                s(f's_add_u32 s{sSOW}, s{sSOW}, {4 * 14336}')
            if n < 4:
                s(f'buffer_load_dwordx4 v{VXD + n}, {srd(SRD_X)}, s{sSOX} offen offset:{1024 * n} {opt.ld_in} lds', tag=f'c{i}')
            else:
                s(f'buffer_load_dwordx4 v{VWDM + (n & 3)}, {srd(SRD_W)}, s{sSOW} offen offset:{1024 * (n & 3)} {opt.ld_in} lds', tag=f'c{i}')
            out.append(s.l)
        return out

    for i in range(2):
        for grp in g1_dma(i):
            e.add(grp)
    code_prefetch(e, 'L_pcg')
    late_srds(e)
    e(f'''
    v_and_b32 v92, 1, v3
    v_lshrrev_b32 v93, 1, v3
    v_lshl_add_u32 v93, v93, 3, v7
    v_lshlrev_b32 v93, 8, v93
    v_lshl_add_u32 v93, v92, 14, v93
    v_lshl_add_u32 v93, v8, 3, v93
    v_lshlrev_b32 v92, 2, v92
    v_xor_b32 v92, v92, v7
    v_lshl_add_u32 v{VRW[0]}, v92, 5, v93
    ''')
    for t in range(1, 8):
        e(f'v_xor_b32 v{VRW[0] + t}, {t << 5}, v{VRW[0]}')
    for t in range(8):
        e(f'v_add_u32 v{VRW[1] + t}, {SLOT[2]}, v{VRW[0] + t}')
    e(f'''
    v_and_b32 v92, 31, v1
    v_lshrrev_b32 v93, 1, v92
    v_and_b32 v93, 7, v93
    v_lshrrev_b32 v94, 5, v1
    v_xor_b32 v93, v93, v94
    v_lshlrev_b32 v93, 4, v93
    v_lshl_add_u32 v93, v92, 7, v93
    v_add_u32 v{VRX[0]}, s{sM0X}, v93
    ''')
    for ks in range(1, 4):
        e(f'v_xor_b32 v{VRX[0] + ks}, {ks << 5}, v{VRX[0]}')
    for ks in range(4):
        e(f'v_add_u32 v{VRX[1] + ks}, {SLOT[2]}, v{VRX[0] + ks}')
    stamp(e, 'issued')
    p_compute(e)
    stamp(e, 'Pdone')
    wd_addr_setup(e)

    ACC = 128
    NB = opt.NB
    AF = 256 - 4 * NB - 16
    BF = 256 - 16
    mains = []
    reads = {}
    for i in range(8):
        slot = SLOT[i % 3]
        st = 1 if i % 3 == 2 else 0
        imm = 0 if st else slot
        rl = []
        for ks in range(4):
            bq = BF + 4 * ((4 * i + ks) % 4)
            rl.append((I(f'ds_read_b128 a[{bq}:{bq + 3}], v{VRX[st] + ks} offset:{imm}', tag=f'r{i}'), 32 * i + 8 * ks, 'B'))
            for t in range(8):
                m = 32 * i + 8 * ks + t
                aq = AF + 4 * (m % NB)
                for h in range(2):
                    rl.append((I(f'ds_read_b64_tr_b16 a[{aq + 2 * h}:{aq + 2 * h + 1}], v{VRW[st] + t} offset:{imm + ks * 4096 + h * 1024}', tag=f'r{i}'), m, 'A'))
                c = '0' if (i == 0 and ks == 0) else f'v[{ACC + 16 * t}:{ACC + 16 * t + 15}]'
                mains.append(I(f'v_mfma_f32_32x32x16_bf16 v[{ACC + 16 * t}:{ACC + 16 * t + 15}], a[{aq}:{aq + 3}], a[{bq}:{bq + 3}], {c}'))
        reads[i] = rl
    gaps = {}
    D, G = opt.D, opt.G

    def put(g, items):
        gaps.setdefault(g, [])
        gaps[g].extend(items if isinstance(items, list) else [items])

    pre = Stream()
    pre.wait('c0', 'LGKM0')
    pre('s_barrier')
    stamp(pre, 'slot0')
    put(-1, pre.l)
    for i in range(8):
        lo = 32 * i - D
        hi = 32 * (i + 1) - D - G
        rl = reads[i]
        n = len(rl)
        for jx, (ins, m, kind) in enumerate(rl):
            g = max(-1, lo + (jx * (hi - lo + 1)) // n)
            lim = (m - NB) if kind == 'A' else (m - 32 + 7)
            g = max(g, lim)
            assert g < m, (i, jx, g, m)
            assert g <= 32 * (i + 1) - D - 1 or i == 7
            put(g, ins)
        if i < 7:
            b = Stream()
            b.wait(f'c{i + 1}', 'LGKM0')
            b('s_barrier')
            g = 32 * (i + 1) - D
            gaps.setdefault(g, [])
            gaps[g] = b.l + gaps[g]
    for i in range(6):
        lo = max(32 * i - D + 1, 0)
        spread(gaps, g1_dma(i + 2), lo, lo + 27)
    s = Stream()
    s(f's_lshl_b32 s{sT0}, s{sXCD}, 12\ns_lshl_b32 s{sT1}, s{sJ}, 7\ns_add_u32 s{sT0}, s{sT0}, s{sT1}\ns_add_u32 s{sT0}, s{sT0}, {FLAG_P}')
    put(64 - D + 1, s.l + flag_block(sT0, 'L_pf'))
    spread(gaps, wd_dma(0) + wd_dma(1) + wd_dma(2) + wd_dma(3), 32 * 6 - D + 1, 32 * 6 - D + 30)
    spread(gaps, wd_dma(4) + wd_dma(5) + wd_dma(6), 32 * 7 - D + 1, 32 * 7 - D + 28)
    s = Stream()
    s(f'''
    s_and_b32 s{sT0}, s{sXCD}, 3
    s_bfe_u32 s{sT1}, s{sJ}, 0x10001
    s_lshl_b32 s{sT1}, s{sT1}, 2
    s_add_u32 s{sT0}, s{sT0}, s{sT1}
    s_lshl_b32 s{sT0}, s{sT0}, 2
    s_and_b32 s{sT1}, s{sJ}, 1
    s_lshl_b32 s{sT1}, s{sT1}, 1
    s_add_u32 s{sT0}, s{sT0}, s{sT1}
    s_lshr_b32 s{sT1}, s{sJ}, 2
    s_lshl_b32 s{sT1}, s{sT1}, 1
    s_and_b32 s{sT2}, s{sXCD}, 4
    s_lshl_b32 s{sT2}, s{sT2}, 2
    s_add_u32 s{sT1}, s{sT1}, s{sT2}
    v_mov_b32 v20, s{sT0}
    v_mov_b32 v21, s{sT1}
    v_and_b32 v22, 1, v1
    v_and_b32 v23, 2, v1
    v_cmp_eq_u32 vcc, 0, v23
    v_cndmask_b32 v20, v21, v20, vcc
    v_add_u32 v20, v20, v22
    v_lshlrev_b32 v20, 7, v20
    v_add_u32 v20, {FLAG_S}, v20
    ''')
    spread(gaps, [[x] for x in s.l], 32 * 4, 32 * 4 + 24)
    s = Stream()
    poll_issue(s, 20, 21)
    put(32 * 5 + 8, s.l)
    s = Stream()
    s(f'''
    v_and_b32 v22, 31, v1
    s_lshl_b32 s{sT0}, s{sB}, 10
    s_lshl_b32 s{sT1}, s{sW}, 8
    s_add_u32 s{sT0}, s{sT0}, s{sT1}
    s_add_u32 s{sT0}, s{sT0}, {STATS}
    v_lshl_add_u32 v22, v22, 3, s{sT0}
    v_and_b32 v23, 1, v3
    v_mul_u32_u24 v23, {1792 * 8}, v23
    v_lshl_add_u32 v23, v4, 3, v23
    s_lshl_b32 s{sT0}, s{sA}, 10
    s_add_u32 s{sT0}, s{sT0}, {CS}
    v_add_u32 v23, s{sT0}, v23
    v_cmp_lt_u32 vcc, 31, v1
    v_mov_b32 v24, 0x80000000
    v_cndmask_b32 v23, v23, v24, vcc
    ''')
    for t in range(8):
        s(f'v_mov_b32 v{34 + 4 * t}, 0\nv_mov_b32 v{35 + 4 * t}, 0')
    spread(gaps, [[x] for x in s.l], 32 * 5 + 9, 32 * 6 - 1)
    s = Stream()
    poll_check(s, 20, 21, 'sf')
    s(f'buffer_load_dwordx2 v[26:27], v22, {srd(SRD_WS)}, 0 offen sc1')
    put(32 * 6 + 2, s.l)
    s = Stream()
    for t in range(8):
        s(f'buffer_load_dwordx2 v[{32 + 4 * t}:{33 + 4 * t}], v23, {srd(SRD_WS)}, 0 offen offset:{128 * t} sc1')
    spread(gaps, [[x] for x in s.l], 32 * 6 + 4, 32 * 6 + 26)
    s = Stream()
    s(f'''
    v_rsq_f32 v24, v27
    v_sub_f32 v28, 0, v26
    v_cvt_pk_bf16_f32 v29, v28, v28
    v_mul_f32 v24, 0xbfb8aa3b, v24
    v_lshlrev_b32 v29, 16, v29
    v_mov_b32 v22, v27
    v_sub_f32 v29, v28, v29
    v_mov_b32 v25, v24
    v_cvt_pk_bf16_f32 v28, v28, v29
    v_mov_b32 v23, v27
    v_mov_b32 v29, v28
    v_mov_b32 v30, v28
    v_mov_b32 v31, v28
    ''')
    spread(gaps, [[x] for x in s.l], 32 * 7 + 8, 32 * 7 + 24)
    s = Stream()
    p_poll_setup(s)
    put(32 * 7 + 2, s.l)
    e.add(weave(mains, gaps))
    for t in range(8):
        e(f'v_mfma_f32_32x32x16_bf16 v[{ACC + 16 * t}:{ACC + 16 * t + 15}], v[{32 + 4 * t}:{35 + 4 * t}], v[28:31], v[{ACC + 16 * t}:{ACC + 16 * t + 15}]')
    stamp(e, 'G1loop')
    cv_loads(e)
    u_loads(e, 'pf')
    e(f'''
    s_lshl_b32 s{sT0}, s{sB}, 2
    s_add_u32 s{sT0}, s{sT0}, s{sW}
    s_mul_i32 s{sT0}, s{sT0}, 112
    s_lshl_b32 s{sT1}, s{sA}, 3
    s_add_u32 s{sT0}, s{sT0}, s{sT1}
    s_lshl_b32 s{sT0}, s{sT0}, 10
    s_add_u32 s{sHB}, s{sT0}, {HH}
    s_add_u32 s{sHB + 1}, s{sHB}, 4096
    ''')
    for t in range(8):
        A = ACC + 16 * t
        T = 32 + 16 * (t & 1)
        O = 64 + 4 * (t & 1)
        for p in range(4):
            e(f'v_pk_mul_f32 v[{T + 2 * p}:{T + 2 * p + 1}], v[{A + 2 * p}:{A + 2 * p + 1}], v[24:25]')
        for k in range(8):
            e(f'v_exp_f32 v{T + k}, v{T + k}')
        for p in range(4):
            e(f'v_pk_mul_f32 v[{T + 8 + 2 * p}:{T + 9 + 2 * p}], v[{A + 2 * p}:{A + 2 * p + 1}], v[{A + 8 + 2 * p}:{A + 9 + 2 * p}]')
        for p in range(4):
            e(f'v_pk_fma_f32 v[{T + 2 * p}:{T + 2 * p + 1}], v[{T + 2 * p}:{T + 2 * p + 1}], v[22:23], v[22:23]')
        for k in range(8):
            e(f'v_rcp_f32 v{T + k}, v{T + k}')
        for p in range(4):
            e(f'v_pk_mul_f32 v[{T + 8 + 2 * p}:{T + 9 + 2 * p}], v[{T + 8 + 2 * p}:{T + 9 + 2 * p}], v[{T + 2 * p}:{T + 2 * p + 1}]')
        for p in range(4):
            e(f'v_cvt_pk_bf16_f32 v{O + p}, v{T + 8 + 2 * p}, v{T + 9 + 2 * p}')
        e(f'buffer_store_dwordx4 v[{O}:{O + 3}], v122, {srd(SRD_WS)}, s{sHB + (t >> 2)} offen offset:{1024 * (t & 3)} sc1', tag='hst')
    e(f'''
    s_lshl_b32 s{sT0}, s{sB}, 1
    s_lshr_b32 s{sT1}, s{sW}, 1
    s_add_u32 s{sT0}, s{sT0}, s{sT1}
    s_lshl_b32 s{sT0}, s{sT0}, 5
    s_lshl_b32 s{sT1}, s{sA}, 1
    s_add_u32 s{sT0}, s{sT0}, s{sT1}
    s_and_b32 s{sT1}, s{sW}, 1
    s_add_u32 s{sT0}, s{sT0}, s{sT1}
    s_lshl_b32 s{sT0}, s{sT0}, 7
    s_add_u32 s{sHB}, s{sT0}, {FLAG_H}
    ''')
    stamp(e, 'G1epi')

    T = Stream()
    e = T
    e('L_tail:')
    e.wait('LGKM0')
    e('s_barrier')
    e(f'''
    s_lshr_b32 s{sT0}, s{sW}, 1
    s_and_b32 s{sT2}, s{sW}, 1
    s_lshl_b32 s{sT3}, s{sT2}, 11
    s_mul_i32 s{sT0}, s{sT0}, {CVCH}
    s_add_u32 s{sT0}, s{sT0}, {CV}
    s_add_u32 s{sT1}, s{sT0}, s{sT3}
    v_add_u32 v128, s{sT1}, v122
    v_mul_u32_u24 v129, 4160, v3
    v_lshl_add_u32 v129, v4, 1, v129
    v_add_u32 v129, s{sT0}, v129
    v_add_u32 v130, s{sT0}, v122
    v_mov_b32 v132, 0
    v_mov_b32 v133, 0
    v_mov_b32 v134, 0
    v_mov_b32 v135, 0
    ''')
    e(f'ds_write_b128 v130, v[132:135] offset:{CVR + 4096}', tag='cvw')
    e(f'ds_write_b16 v129, v120', tag='cvw')
    for c in range(2):
        L0, L1, L2 = 96 + 8 * c, 100 + 8 * c, 112 + c
        t1, t3 = 136 + 8 * c, 140 + 8 * c
        e(f'ds_write_b128 v128, v[{L0}:{L0 + 3}] offset:{32 + 1024 * c}', tag='cvw')
        e(f'ds_write_b128 v128, v[{L1}:{L1 + 3}] offset:{2 * 4160 + 32 + 1024 * c}', tag='cvw')
        for n in range(4):
            e(f'v_alignbit_b32 v{t1 + n}, v{L1 + n}, v{L0 + n}, 16')
        e(f'ds_write_b128 v128, v[{t1}:{t1 + 3}] offset:{4160 + 32 + 1024 * c}', tag='cvw')
        for n in range(4):
            hi = f'v{L1 + n + 1}' if n < 3 else f'v{L2}'
            e(f'v_alignbit_b32 v{t3 + n}, {hi}, v{L1 + n}, 16')
        e(f'ds_write_b128 v128, v[{t3}:{t3 + 3}] offset:{3 * 4160 + 32 + 1024 * c}', tag='cvw')
    e(f'ds_write_b128 v128, v[84:87] offset:{CVR}', tag='cvw')
    e(f'ds_write_b128 v128, v[88:91] offset:{CVR + 1024}', tag='cvw')
    e(f'''
    v_add_u32 v152, 1, v4
    v_and_b32 v153, 3, v152
    v_mul_u32_u24 v153, 4160, v153
    v_and_b32 v152, 28, v152
    v_lshl_add_u32 v153, v152, 1, v153
    v_lshl_add_u32 v153, v3, 4, v153
    s_lshl_b32 s{sT3}, s{sT2}, 8
    s_add_u32 s{sT3}, s{sT3}, s{sT0}
    v_add_u32 v70, s{sT3}, v153
    v_lshlrev_b32 v153, 5, v4
    v_lshlrev_b32 v154, 4, v3
    v_sub_u32 v154, v154, v153
    s_add_u32 s{sT3}, s{sT3}, {CVR + 480}
    v_add_u32 v71, s{sT3}, v154
    v_lshlrev_b32 v154, 3, v3
    v_add_u32 v154, v154, v153
    s_lshl_b32 s{sT3}, s{sT2}, 11
    s_sub_u32 s{sT3}, s{sT0}, s{sT3}
    s_add_u32 s{sT3}, s{sT3}, {CVR + 4088 - 1536}
    v_sub_u32 v69, s{sT3}, v154
    v_lshlrev_b32 v121, 16, v121
    v_and_b32 v154, 1, v3
    v_lshl_add_u32 v153, v154, 9, v153
    v_lshrrev_b32 v154, 1, v3
    v_lshl_add_u32 v68, v154, 4, v153
    ''')
    e.wait('cvw')
    e('s_barrier')
    stamp(e, 'cvsetup')
    CA = 32
    FR = [128, 192]

    def cv_reads(mu):
        f = FR[mu & 1]
        out = []
        for k in range(8):
            out.append(I(f'ds_read_b64 v[{f + 4 * k}:{f + 4 * k + 1}], v70 offset:{512 * k + 64 * mu}'))
            out.append(I(f'ds_read_b64 v[{f + 4 * k + 2}:{f + 4 * k + 3}], v70 offset:{512 * k + 64 * mu + 8}'))
            out.append(I(f'ds_read_b128 v[{f + 32 + 4 * k}:{f + 32 + 4 * k + 3}], v71 offset:{3584 - 512 * k + 64 * mu}'))
        return out
    mains = []
    for mu in range(4):
        f = FR[mu & 1]
        for nt in range(8):
            for mp in range(nt + 1):
                c = '0' if (mu == 0 and mp == 0) else f'v[{CA + 4 * nt}:{CA + 4 * nt + 3}]'
                mains.append(I(f'v_mfma_f32_16x16x32_bf16 v[{CA + 4 * nt}:{CA + 4 * nt + 3}], v[{f + 4 * mp}:{f + 4 * mp + 3}], v[{f + 32 + 4 * (nt - mp)}:{f + 32 + 4 * (nt - mp) + 3}], {c}'))
    gaps = {}
    gaps[-1] = cv_reads(0)
    for mu in range(3):
        spread(gaps, cv_reads(mu + 1), 36 * mu + 1, 36 * mu + 30)
    for i in range(7):
        g0 = 2 + 7 * i
        gaps.setdefault(g0, []).append(WAIT(f'wd{i}'))
        spread(gaps, wd_reads(i), g0, g0 + 5)
        d = wd_dma(7 + i)
        d[0] = [WAIT(f'wr{i}')] + d[0]
        spread(gaps, d, g0 + 9, g0 + 15)
    s = Stream()
    s.wait('hst')
    set_flag(s, sHB, None, False)
    gaps.setdefault(40, []).extend(s.l)
    for i in range(7):
        g0 = 80 + 9 * i
        gaps.setdefault(g0, []).append(WAIT(f'wd{7 + i}'))
        spread(gaps, wd_reads(7 + i), g0, g0 + 8)
    s = Stream()
    s(f'''
    s_lshl_b32 s{sT0}, s{sRB2}, 12
    s_add_u32 s{sT0}, s{sT0}, {FLAG_H}
    v_min_u32 v126, 27, v1
    v_lshl_add_u32 v126, v126, 7, s{sT0}
    ''')
    poll_issue(s, 126, 127)
    gaps.setdefault(130, []).extend(s.l)
    e.add(weave(mains, gaps))
    stamp(e, 'cvmain')
    e(f'''
    s_nop 7
    s_and_b32 s{sT0}, s{sW}, 1
    s_cmp_eq_u32 s{sT0}, 0
    s_cbranch_scc1 L_noswap
    ''')
    for k in range(16):
        e(f'v_swap_b32 v{CA + k}, v{CA + 16 + k}')
    e('L_noswap:')
    e(f'''
    s_xor_b32 s{sT1}, s{sW}, 1
    s_lshl_b32 s{sT1}, s{sT1}, 14
    s_add_u32 s{sT1}, s{sT1}, {WD_A}
    v_add_u32 v72, s{sWDA}, v122
    v_add_u32 v73, s{sT1}, v122
    ''')
    e.wait('wr7')
    for k in range(4):
        e(f'ds_write_b128 v72, v[{CA + 16 + 4 * k}:{CA + 19 + 4 * k}] offset:{1024 * k}', tag='cx')
    for k in range(4):
        e(f'ds_read_b64 v[{96 + 2 * k}:{97 + 2 * k}], v69 offset:{1536 - 512 * k}')
    e.wait('cx')
    e('s_barrier')
    for k in range(4):
        e(f'ds_read_b128 v[{CA + 16 + 4 * k}:{CA + 19 + 4 * k}], v73 offset:{1024 * k}')
    poll_check(e, 126, 127, 'hf')
    stamp(e, 'hflag')
    HR = 128
    NH = 24
    e(f'''
    v_lshrrev_b32 v9, 1, v3
    v_lshlrev_b32 v9, 10, v9
    v_and_b32 v64, 1, v3
    v_lshl_add_u32 v9, v64, 9, v9
    v_lshl_add_u32 v9, v4, 4, v9
    s_mul_i32 s{sHL}, s{sRB2}, {2 * 112 * 1024}
    s_mul_i32 s{sT0}, s{sW}, {28 * 1024}
    s_add_u32 s{sHL}, s{sHL}, s{sT0}
    s_add_u32 s{sHL}, s{sHL}, {HH}
    ''')
    sRT = [13, 20, 21, 22]
    sRW = [23, 24, 25, 30]
    for rho in range(4):
        e(f'''
        s_add_u32 s{sT0}, s{sDB}, {rho}
        s_and_b32 s{sT0}, s{sT0}, 3
        s_lshl_b32 s{sRW[rho]}, s{sT0}, 4
        s_lshr_b32 s{sT1}, s{sT0}, 1
        s_mul_i32 s{sT1}, s{sT1}, {112 * 1024}
        s_and_b32 s{sT0}, s{sT0}, 1
        s_lshl_b32 s{sT0}, s{sT0}, 8
        s_add_u32 s{sT0}, s{sT0}, s{sT1}
        s_add_u32 s{sRT[rho]}, s{sT0}, s{sHL}
        ''')

    def h_load(n):
        rho, i = divmod(n, 14)
        r = HR + 4 * (n % NH)
        s = Stream()
        s(f's_add_u32 s{sSO2}, s{sRT[rho]}, s{sSTEP + i}')
        s(f'buffer_load_dwordx4 v[{r}:{r + 3}], v9, {srd(SRD_WS)}, s{sSO2} offen sc1')
        return s.l
    for n in range(NH):
        e.add(h_load(n))
    for k in range(4):
        a = CA + 4 * k
        e(f'v_pk_add_f32 v[{a}:{a + 1}], v[{a}:{a + 1}], v[{a + 16}:{a + 17}]')
        e(f'v_pk_add_f32 v[{a + 2}:{a + 3}], v[{a + 2}:{a + 3}], v[{a + 18}:{a + 19}]')
        d0, d1 = 96 + 2 * k, 97 + 2 * k
        e(f'''
        v_and_b32 v104, 0xffff0000, v{d1}
        v_lshlrev_b32 v105, 16, v{d1}
        v_and_b32 v106, 0xffff0000, v{d0}
        v_lshlrev_b32 v107, 16, v{d0}
        v_fmac_f32 v{a}, v121, v104
        v_fmac_f32 v{a + 1}, v121, v105
        v_fmac_f32 v{a + 2}, v121, v106
        v_fmac_f32 v{a + 3}, v121, v107
        v_cvt_pk_bf16_f32 v{108 + 2 * k}, v{a}, v{a + 1}
        v_cvt_pk_bf16_f32 v{109 + 2 * k}, v{a + 2}, v{a + 3}
        ''')
    for ip in range(2):
        b = 108 + 4 * ip
        e(f'v_permlane16_swap_b32 v{b}, v{b + 2}')
        e(f'v_permlane16_swap_b32 v{b + 1}, v{b + 3}')
        e(f'buffer_store_dwordx4 v[{b}:{b + 3}], v68, {srd(SRD_WS)}, s{sSOW} offen offset:{1024 * ip} sc1', tag='yst')
    stamp(e, 'cvdone')
    GA = [32, 48]
    OO = 64
    XX = 80
    s = Stream()
    s(f'''
    s_lshl_b32 s{sT0}, s{sRB2}, 16
    s_lshl_b32 s{sT1}, s{sDB}, 7
    s_add_u32 s{sT0}, s{sT0}, s{sT1}
    s_lshl_b32 s{sT1}, s{sW}, 5
    s_add_u32 s{sT0}, s{sT0}, s{sT1}
    v_lshlrev_b32 v120, 10, v4
    v_lshl_add_u32 v120, v3, 3, v120
    v_add_u32 v120, s{sT0}, v120
    s_lshl_b32 s{sT0}, s{sRB2}, 9
    s_add_u32 s{sT0}, s{sT0}, {STATS}
    v_lshl_add_u32 v123, v4, 3, s{sT0}
    s_lshl_b32 s{sT0}, s{sW}, 10
    s_add_u32 s{sT0}, s{sT0}, {RED}
    v_add_u32 v124, s{sT0}, v122
    s_lshl_b32 s{sT0}, s{sW}, 12
    s_add_u32 s{sT0}, s{sT0}, {RED}
    v_add_u32 v125, s{sT0}, v122
    s_lshl_b32 s{sT0}, s{sDB}, 12
    s_add_u32 s{sT0}, s{sT0}, {FLAG_Y}
    v_and_b32 v126, 31, v1
    v_lshl_add_u32 v126, v126, 7, s{sT0}
    ''')
    g2_setup = s.l
    mains = []
    for rho in range(4):
        for i in range(14):
            n = 14 * rho + i
            r = HR + 4 * (n % NH)
            for dt in range(4):
                a = GA[rho & 1] + 4 * dt
                c = '0' if i == 0 else f'v[{a}:{a + 3}]'
                mains.append(I(f'v_mfma_f32_16x16x32_bf16 v[{a}:{a + 3}], a[{16 * i + 4 * dt}:{16 * i + 4 * dt + 3}], v[{r}:{r + 3}], {c}'))
    gaps = {}
    spread(gaps, [[x] for x in g2_setup], 0, 20)
    for n in range(NH, 56):
        gaps.setdefault(4 * (n - NH) + 3, []).extend(h_load(n))
    s = Stream()
    for rho in range(4):
        s(f's_lshl_b32 s{sT0}, s{sRW[rho]}, 10')
        s(f'buffer_load_dwordx2 v[{XX + 2 * rho}:{XX + 2 * rho + 1}], v120, {srd(SRD_X)}, s{sT0} offen')
        s(f's_lshl_b32 s{sT1}, s{sRW[rho]}, 3')
        s(f'buffer_load_dwordx2 v[{88 + 2 * rho}:{89 + 2 * rho}], v123, {srd(SRD_WS)}, s{sT1} offen sc1')
    spread(gaps, [s.l[0:2], s.l[2:4], s.l[4:6], s.l[6:8], s.l[8:10], s.l[10:12], s.l[12:14], s.l[14:16]], 22, 50)
    s = Stream()
    s.wait('yst')
    s('s_barrier')
    s(f's_lshl_b32 s{sT2}, s{sXCD}, 12\ns_lshl_b32 s{sT3}, s{sJ}, 7\ns_add_u32 s{sT2}, s{sT2}, s{sT3}\ns_add_u32 s{sT2}, s{sT2}, {FLAG_Y}')
    gaps.setdefault(28, []).extend(s.l + flag_block(sT2, 'L_yf'))

    def red_write(rho):
        out = []
        for dt in range(4):
            a = GA[rho & 1] + 4 * dt
            out.append(I(f'ds_write_b128 v124, v[{a}:{a + 3}] offset:{16384 * (rho & 1) + 4096 * dt}', tag=f'rw{rho}'))
        return out

    def red_read(rho, base):
        return [I(f'ds_read_b128 v[{base + 4 * sw}:{base + 4 * sw + 3}], v125 offset:{16384 * (rho & 1) + 1024 * sw}') for sw in range(4)]

    def red_sum(rho, base):
        o = OO + 4 * rho
        s = Stream()
        s(f'''
        v_pk_add_f32 v[{base}:{base + 1}], v[{base}:{base + 1}], v[{base + 4}:{base + 5}]
        v_pk_add_f32 v[{base + 2}:{base + 3}], v[{base + 2}:{base + 3}], v[{base + 6}:{base + 7}]
        v_pk_add_f32 v[{base + 8}:{base + 9}], v[{base + 8}:{base + 9}], v[{base + 12}:{base + 13}]
        v_pk_add_f32 v[{base + 10}:{base + 11}], v[{base + 10}:{base + 11}], v[{base + 14}:{base + 15}]
        v_pk_add_f32 v[{o}:{o + 1}], v[{base}:{base + 1}], v[{base + 8}:{base + 9}]
        v_pk_add_f32 v[{o + 2}:{o + 3}], v[{base + 2}:{base + 3}], v[{base + 10}:{base + 11}]
        ''')
        return s.l

    RT = 8
    RT = 10

    def z_prep(rho):
        s = Stream()
        z = 104 + 4 * rho
        x0, x1, mu_, cc, y0, y1 = XX + 2 * rho, XX + 2 * rho + 1, 88 + 2 * rho, 89 + 2 * rho, 96 + 2 * rho, 97 + 2 * rho
        s(f'''
        v_rsq_f32 v{cc}, v{cc}
        v_lshlrev_b32 v{z}, 16, v{x0}
        v_and_b32 v{z + 1}, 0xffff0000, v{x0}
        v_lshlrev_b32 v{z + 2}, 16, v{x1}
        v_and_b32 v{z + 3}, 0xffff0000, v{x1}
        v_sub_f32 v{z}, v{z}, v{mu_}
        v_sub_f32 v{z + 1}, v{z + 1}, v{mu_}
        v_sub_f32 v{z + 2}, v{z + 2}, v{mu_}
        v_sub_f32 v{z + 3}, v{z + 3}, v{mu_}
        v_lshlrev_b32 v26, 16, v{y0}
        v_and_b32 v27, 0xffff0000, v{y0}
        v_lshlrev_b32 v28, 16, v{y1}
        v_and_b32 v29, 0xffff0000, v{y1}
        v_mul_f32 v{z}, v{z}, v{cc}
        v_mul_f32 v{z + 1}, v{z + 1}, v{cc}
        v_mul_f32 v{z + 2}, v{z + 2}, v{cc}
        v_mul_f32 v{z + 3}, v{z + 3}, v{cc}
        v_mul_f32 v{z}, v{z}, v26
        v_mul_f32 v{z + 1}, v{z + 1}, v27
        v_mul_f32 v{z + 2}, v{z + 2}, v28
        v_mul_f32 v{z + 3}, v{z + 3}, v29
        ''')
        return s.l

    def final(rho):
        s = Stream()
        o, z, x0, x1 = OO + 4 * rho, 104 + 4 * rho, XX + 2 * rho, XX + 2 * rho + 1
        t = 240
        for r in range(4):
            s(f'v_mul_f32 v{t + r}, 0xbfb8aa3b, v{o + r}')
        for r in range(4):
            s(f'v_exp_f32 v{t + r}, v{t + r}')
        for r in range(4):
            s(f'v_mul_f32 v{o + r}, v{o + r}, v{z + r}')
        for r in range(4):
            s(f'v_add_f32 v{t + r}, 1.0, v{t + r}')
        for r in range(4):
            s(f'v_rcp_f32 v{t + r}, v{t + r}')
        s(f'''
        v_lshlrev_b32 v{t + 4}, 16, v{x0}
        v_and_b32 v{t + 5}, 0xffff0000, v{x0}
        v_lshlrev_b32 v{t + 6}, 16, v{x1}
        v_and_b32 v{t + 7}, 0xffff0000, v{x1}
        ''')
        for r in range(4):
            s(f'v_fmac_f32 v{t + 4 + r}, v{o + r}, v{t + r}')
        s(f'''
        v_cvt_pk_bf16_f32 v{t + 8}, v{t + 4}, v{t + 5}
        v_cvt_pk_bf16_f32 v{t + 9}, v{t + 6}, v{t + 7}
        s_lshl_b32 s{sT0}, s{sRW[rho]}, 10
        buffer_store_dwordx2 v[{t + 8}:{t + 9}], v120, {srd(SRD_OUT)}, s{sT0} offen {opt.out_st}
        ''')
        return s.l

    for rho in range(3):
        g = 56 * (rho + 1)
        spread(gaps, red_write(rho), g + 4, g + 7)
        s = Stream()
        s.wait(f'rw{rho}')
        s('s_barrier')
        gaps.setdefault(g + 11, []).extend(s.l)
        spread(gaps, red_read(rho, RT), g + 12, g + 15)
        spread(gaps, red_sum(rho, RT), g + 20, g + 25)
    s = Stream()
    poll_issue(s, 126, 127)
    gaps.setdefault(56 + 40, []).extend(s.l)
    s = Stream()
    poll_check(s, 126, 127, 'yf')
    s(f'''
    s_lshl_b32 s{sT0}, s{sDB}, 6
    s_lshl_b32 s{sT1}, s{sW}, 4
    s_add_u32 s{sT0}, s{sT0}, s{sT1}
    s_lshl_b32 s{sT0}, s{sT0}, 12
    s_lshl_b32 s{sT1}, s{sRB2}, 7
    s_add_u32 s{sT0}, s{sT0}, s{sT1}
    s_add_u32 s{sT0}, s{sT0}, {YT}
    s_add_u32 s{sT1}, s{sT0}, 32768
    v_lshlrev_b32 v30, 12, v5
    v_lshl_add_u32 v30, v6, 4, v30
    buffer_load_dwordx4 v[244:247], v30, {srd(SRD_WS)}, s{sT0} offen sc1
    buffer_load_dwordx4 v[248:251], v30, {srd(SRD_WS)}, s{sT1} offen sc1
    ''')
    gaps.setdefault(112 - 4, []).extend(s.l)
    s = Stream()
    s(f'''
    s_mul_i32 s{sT0}, s{sW}, 2560
    s_add_u32 s{sT0}, s{sT0}, {YS}
    v_mul_u32_u24 v30, 160, v5
    v_lshl_add_u32 v30, v6, 4, v30
    v_add_u32 v30, s{sT0}, v30
    v_lshl_add_u32 v31, v3, 2, v7
    v_mul_u32_u24 v31, 160, v31
    v_and_b32 v26, 3, v1
    v_lshl_add_u32 v31, v26, 3, v31
    v_add_u32 v31, s{sT0}, v31
    ''')
    spread(gaps, [[x] for x in s.l], 112 + 26, 112 + 35)
    s = Stream()
    s('ds_write_b128 v30, v[244:247]', tag='ys')
    s(f'ds_write_b128 v30, v[248:251] offset:{8 * 160}', tag='ys')
    spread(gaps, [[x] for x in s.l], 112 + 40, 112 + 41)
    s = Stream()
    s.wait('ys')
    for rho in range(4):
        s(f's_lshl_b32 s{sT0}, s{sRW[rho]}, 1\nv_add_u32 v26, s{sT0}, v31')
        s(f'ds_read_b64_tr_b16 v[{96 + 2 * rho}:{97 + 2 * rho}], v26')
    gaps.setdefault(112 + 46, []).extend(s.l)
    work = z_prep(0) + final(0) + z_prep(1) + final(1)
    spread(gaps, [[x] for x in work], 112 + 50, 168 + 27)
    work = z_prep(2) + final(2) + z_prep(3)
    spread(gaps, [[x] for x in work], 168 + 28, 168 + 55)
    e.add(weave(mains, gaps))
    stamp(e, 'G2main')
    e.add(red_write(3))
    e.wait('rw3')
    e('s_barrier')
    e.add(red_read(3, RT))
    e.add(red_sum(3, RT))
    e.add(final(3))
    e(f'''
    s_or_b32 s{sT0}, s2, s{sW}
    s_cmp_lg_u32 s{sT0}, 0
    s_cbranch_scc1 L_fin
    v_lshlrev_b32 v126, 7, v1
    v_add_u32 v126, {FLAG_P}, v126
    ''')
    for k in range(4):
        poll_issue(e, 126, 127)
        poll_check(e, 126, 127, f'ep{k}')
        e('v_add_u32 v126, 8192, v126')
    e(f's_mov_b32 s{sT0}, {EPOCH}')
    set_flag(e, sT0, None, False)
    e('L_fin:')
    if opt.stamps:
        stamp(e, 'end')
        e('s_waitcnt lgkmcnt(0)')
        k = len(stamps) - 1
        e.add([raw(f'v_writelane_b32 v2, s{SP[k & 1]}, {k}')])
        e(f'''
        s_lshl_b32 s{sT0}, s2, 2
        s_add_u32 s{sT0}, s{sT0}, s{sW}
        s_lshl_b32 s{sT0}, s{sT0}, 6
        s_add_u32 s{sT0}, s{sT0}, {STAMP}
        v_lshl_add_u32 v10, v1, 2, s{sT0}
        s_mov_b64 exec, 0xffff
        buffer_store_dword v2, v10, {srd(SRD_WS)}, 0 offen
        ''')
    e('L_end:')
    e('s_endpgm')

    S = Stream()
    e = S
    e('L_srole:')
    e(f'''
    s_sub_u32 s{sA}, s{sJ}, 28
    s_and_b32 s{sT0}, s{sXCD}, 3
    s_lshl_b32 s{sT1}, s{sT0}, 9
    s_lshr_b32 s{sT2}, s{sXCD}, 2
    s_lshl_b32 s{sT3}, s{sT2}, 8
    s_add_u32 s{sT1}, s{sT1}, s{sT3}
    s_lshl_b32 s{sT3}, s{sA}, 6
    s_add_u32 s{sT1}, s{sT1}, s{sT3}
    s_lshl_b32 s{sT3}, s{sW}, 4
    s_add_u32 s{sB}, s{sT1}, s{sT3}
    s_lshl_b32 s{sSOX}, s{sB}, 10
    v_lshlrev_b32 v122, 4, v1
    s_lshl_b32 s{sT0}, s{sT0}, 2
    s_add_u32 s{sROT}, s{sT0}, s{sA}
    ''')
    for r in range(16):
        if r and r % 4 == 0:
            e(f's_add_u32 s{sSOX}, s{sSOX}, 4096')
        e(f'buffer_load_dwordx4 v[{128 + 4 * r}:{131 + 4 * r}], v122, {srd(SRD_X)}, s{sSOX} offen offset:{1024 * (r % 4)} {opt.ld_in}')
    e(f'''
    s_and_b32 s{sT0}, s{sROT}, 1
    s_cmp_eq_u32 s{sT0}, 0
    s_cselect_b32 s{SRD_W}, s22, s24
    s_cselect_b32 s{SRD_W + 1}, s23, s25
    s_mul_i32 s{sT2}, s{sT2}, 7
    s_lshr_b32 s{sT1}, s{sROT}, 1
    s_add_u32 s{sT2}, s{sT2}, s{sT1}
    s_mul_i32 s{sM0W}, s{sT0}, 1792
    s_lshl_b32 s{sT1}, s{sT2}, 7
    s_add_u32 s{sM0W}, s{sM0W}, s{sT1}
    s_lshl_b32 s{sM0W}, s{sM0W}, 3
    s_add_u32 s{sM0W}, s{sM0W}, {CS}
    s_lshl_b32 s{sT2}, s{sT2}, 8
    s_mul_i32 s{sT1}, s{sW}, {128 * 3584}
    s_add_u32 s{sT2}, s{sT2}, s{sT1}
    s_cmp_ge_u32 s{sROT}, 14
    s_cselect_b32 s{sT2}, 0x80000000, s{sT2}
    s_cselect_b32 s{sM0W}, 0x80000000, s{sM0W}
    v_mul_u32_u24 v84, 3584, v3
    v_lshl_add_u32 v84, v4, 4, v84
    v_add_u32 v84, s{sT2}, v84
    s_mov_b32 s{sSOW}, 0
    ''')
    CW = 192

    def cs_load(n):
        s = Stream()
        r = CW + 4 * (n % 15)
        s(f'buffer_load_dwordx4 v[{r}:{r + 3}], v84, {srd(SRD_W)}, s{sSOW} offen {opt.ld_in}')
        s(f's_add_u32 s{sSOW}, s{sSOW}, 14336')
        return s.l
    for n in range(15):
        e.add(cs_load(n))
    code_prefetch(e, 'L_pcs')
    late_srds(e)
    stamp(e, None, 1)
    p_compute(e)
    stamp(e, None, 2)
    e('v_mov_b32 v85, 0x3f803f80\nv_mov_b32 v86, 0x3f80\nv_mov_b32 v87, 0x3f800000')
    for r in range(16):
        b = 128 + 4 * r
        e(f'v_dot2_f32_bf16 v{20 + r}, v{b}, v85, 0')
        e(f'v_dot2_f32_bf16 v{36 + r}, v{b}, v{b}, 0')
        for k in range(1, 4):
            e(f'v_dot2_f32_bf16 v{20 + r}, v{b + k}, v85, v{20 + r}')
            e(f'v_dot2_f32_bf16 v{36 + r}, v{b + k}, v{b + k}, v{36 + r}')
    for n in range(32):
        r = CW + 4 * (n % 15)
        for k in range(4):
            c0 = '0' if n == 0 else f'v{52 + 2 * k}'
            c1 = '0' if n == 0 else f'v{53 + 2 * k}'
            e(f'v_dot2_f32_bf16 v{52 + 2 * k}, v{r + k}, v86, {c0}')
            e(f'v_dot2_f32_bf16 v{53 + 2 * k}, v{r + k}, v87, {c1}')
        if n + 15 < 32:
            e.add(cs_load(n + 15))
    e(f'''
    s_lshl_b32 s{sT0}, s{sW}, 11
    v_lshlrev_b32 v60, 9, v3
    v_lshl_add_u32 v60, v4, 5, v60
    v_add_u32 v60, s{sT0}, v60
    ''')
    e(f'ds_write_b128 v60, v[52:55] offset:{SCS}', tag='scs')
    e(f'ds_write_b128 v60, v[56:59] offset:{SCS + 16}', tag='scs')
    for base in (20, 36):
        for r in range(8):
            e(f'v_permlane32_swap_b32 v{base + r}, v{base + r + 8}')
        for r in range(8):
            e(f'v_add_f32 v{base + r}, v{base + r}, v{base + r + 8}')
        for r in range(4):
            e(f'v_permlane16_swap_b32 v{base + r}, v{base + r + 4}')
        for r in range(4):
            e(f'v_add_f32 v{base + r}, v{base + r}, v{base + r + 4}')
    for sh in (8, 4, 2, 1):
        for base in (20, 36):
            for r in range(4):
                e(f'v_add_f32_dpp v{base + r}, v{base + r}, v{base + r} row_ror:{sh} row_mask:0xf bank_mask:0xf')
    for base in (20, 36):
        for r in range(1, 4):
            e(f'v_cmp_eq_u32 vcc, {r}, v4')
            e(f'v_cndmask_b32 v{base}, v{base}, v{base + r}, vcc')
    e(f'''
    v_mul_f32 v20, 0x3b000000, v20
    v_mul_f32 v36, 0x3b000000, v36
    v_fma_f32 v21, -v20, v20, v36
    v_max_f32 v21, 0, v21
    v_add_f32 v21, 0x3727c5ac, v21
    v_and_b32 v22, 1, v3
    v_lshl_add_u32 v22, v22, 2, v4
    v_lshrrev_b32 v23, 1, v3
    v_lshl_add_u32 v22, v23, 3, v22
    v_add_u32 v22, s{sB}, v22
    v_lshlrev_b32 v22, 3, v22
    v_add_u32 v22, {STATS}, v22
    v_mov_b32 v23, 0x80000000
    v_cmp_gt_u32 vcc, 4, v4
    v_cndmask_b32 v22, v23, v22, vcc
    ''')
    e(f'buffer_store_dwordx2 v[20:21], v22, {srd(SRD_WS)}, 0 offen sc1', tag='sst')
    e.wait('scs')
    e('s_barrier')
    e('v_and_b32 v61, 127, v0\nv_lshlrev_b32 v62, 2, v61')
    for k in range(16):
        e(f'ds_read_b32 v{24 + k}, v62 offset:{SCS + 512 * k}')
    for stp in (8, 4, 2, 1):
        for k in range(stp):
            e(f'v_add_f32 v{24 + k}, v{24 + k}, v{24 + k + stp}')
    e(f'''
    v_cvt_pk_bf16_f32 v26, v24, v24
    v_lshlrev_b32 v25, 16, v26
    v_sub_f32 v25, v24, v25
    v_cvt_pk_bf16_f32 v27, v25, v25
    v_lshlrev_b32 v61, 3, v61
    v_add_u32 v61, s{sM0W}, v61
    ''')
    e(f'buffer_store_dwordx2 v[26:27], v61, {srd(SRD_WS)}, 0 offen sc1', tag='sst')
    e.wait('VM0')
    e('s_barrier')
    e(f'''
    s_lshl_b32 s{sT0}, s{sXCD}, 2
    s_add_u32 s{sT0}, s{sT0}, s{sA}
    s_lshl_b32 s{sT0}, s{sT0}, 7
    s_add_u32 s{sT0}, s{sT0}, {FLAG_S}
    ''')
    e.add(flag_block(sT0, 'L_sf1'))
    e(f's_lshl_b32 s{sT0}, s{sXCD}, 12\ns_lshl_b32 s{sT1}, s{sJ}, 7\ns_add_u32 s{sT0}, s{sT0}, s{sT1}\ns_add_u32 s{sT0}, s{sT0}, {FLAG_P}')
    e.add(flag_block(sT0, 'L_sf2'))
    wd_addr_setup(e)
    for i in range(7):
        for grp in wd_dma(i):
            e.add(grp)
    p_poll_setup(e)
    cv_loads(e)
    u_loads(e, 'pfs')
    e(f's_mov_b32 s{sHB}, {FLAG_H + 0x1ff80}')
    for k in range(3, stamps.index('G1epi') + 1 if opt.stamps else 0):
        e('s_waitcnt lgkmcnt(0)')
        stamp(e, None, k)
    e.wait('ALL')
    e('s_nop 4')
    e('s_branch L_tail')

    def fin(lst):
        r = resolve_waits(lst)
        for it in r:
            if it.kind == 'vmem_untracked':
                it.kind = 'vmem'
        r, n = insert_nops(r)
        return r, n
    A, n1 = fin(P0.l + G1.l + T.l)
    mark = I('L_mark:')
    Bs, n2 = fin(P0.l + [mark] + S.l)
    Bs = Bs[Bs.index(mark) + 1:]
    body = render(A) + render(Bs) + 'L_codeend:\n'
    hdr = open(os.path.join(os.path.dirname(os.path.abspath(__file__)), 'header.txt')).read()
    txt = hdr + f'''; @launch grid=(256,1,1) block=(256,1,1) lds=163840
.amdgcn_target "amdgcn-amd-amdhsa--gfx950"
.text
.globl {NAME}_kernel
.p2align 8
.type {NAME}_kernel,@function
{NAME}_kernel:
''' + body + f'''.section .rodata,"a"
.p2align 6
.amdhsa_kernel {NAME}_kernel
  .amdhsa_next_free_vgpr 512
  .amdhsa_next_free_sgpr 102
  .amdhsa_accum_offset 256
  .amdhsa_group_segment_fixed_size 0
  .amdhsa_kernarg_size 104
  .amdhsa_user_sgpr_count 2
  .amdhsa_user_sgpr_kernarg_segment_ptr 1
  .amdhsa_system_sgpr_workgroup_id_x 1
.end_amdhsa_kernel
'''
    return txt, stamps, (len(A), len(Bs), n1, n2)


if __name__ == '__main__':
    opt = Opt()
    out = sys.argv[1] if len(sys.argv) > 1 else f'cdna_kernels/{NAME}.s'
    for a in sys.argv[2:]:
        k, v = a.split('=')
        setattr(opt, k, eval(v))
    txt, stamps, info = gen(opt)
    open(out, 'w').write(txt)
    print('wrote', out, 'instrs/nops', info, 'stamps', stamps)
```

```python
import sys, os
sys.path.insert(0, os.path.dirname(os.path.abspath(__file__)))
from asmlib import *

NAME = 'recurrent_scan__ssm_conv_h3__swiglu_ffn__prompt'

WSBASE = 0x8000000
WSSIZE = 0x1000000
EPOCH = 0x0
FLAG_S = 0x1000
FLAG_P = 0x4000
FLAG_Y = 0x10000
FLAG_H = 0x20000
STATS = 0x40000
CS = 0x48000
STAMP = 0x80000
UT = 0x100000
YT = 0x300000
HH = 0x600000

SLOT = [0, 49152, 98304]
PK = 98304
PV = PK + 9216
PO = PV + 8192
WD_A = 98304
WD_B = 0
CV = 49152
CVCH = 21760
CVR = 16640
RED = 49152
YS = 49152 + 32768
SCS = 0

sW, sXCD, sJ, sTAG, sT0 = 3, 4, 5, 6, 7
SRD_X, SRD_K, SRD_V, SRD_W, SRD_SSM, SRD_DN, SRD_OUT, SRD_WS = 36, 40, 44, 48, 52, 56, 60, 64
sA, sB, sROT = 68, 69, 70
sRB2, sDB, sC0 = 71, 72, 73
sT1, sT2, sT3, sT4 = 74, 75, 76, 77
sSPIN = 78
sM0W, sM0X, sMASK = 79, 80, 81
sSOW, sSOX = 82, 83
sHB = 84
sSTEP = 86
sWDA, sWDB = 8, 9
sHL = 11
sSO2 = 12
sST = 20


def srd(r):
    return f's[{r}:{r + 3}]'


class Opt:
    stamps = False
    spin = None
    stop = None
    ld_in = ''
    out_st = ''
    D = 5
    G = 3
    NB = 10


def gen(opt):
    stamps = []
    SP = [26, 28]

    def raw(text):
        it = I(text)
        it.src = set()
        it.dst = set()
        return it

    def stamp(st, name, idx=None):
        if not opt.stamps:
            return
        if idx is None:
            idx = len(stamps)
            stamps.append(name)
        if idx == 0:
            st.add([raw('s_memrealtime s[100:101]')])
            return
        prev = 100 if idx == 1 else SP[(idx - 1) & 1]
        st.add([raw(f'v_writelane_b32 v2, s{prev}, {idx - 1}'), raw(f's_memrealtime s[{SP[idx & 1]}:{SP[idx & 1] + 1}]')])

    P0 = Stream()
    e = P0
    e(f'''
    s_cmp_ge_u32 s2, 256
    s_cbranch_scc1 L_end
    ''')
    stamp(e, 'start')
    e(f'''
    s_load_dwordx16 s[8:23], s[0:1], 0
    s_load_dwordx8 s[24:31], s[0:1], 64
    s_load_dwordx2 s[32:33], s[0:1], 96
    v_lshrrev_b32 v2, 6, v0
    v_and_b32 v1, 63, v0
    s_and_b32 s{sXCD}, s2, 7
    v_readfirstlane_b32 s{sW}, v2
    s_lshr_b32 s{sJ}, s2, 3
    v_lshrrev_b32 v3, 4, v1
    v_and_b32 v4, 15, v1
    v_lshrrev_b32 v5, 3, v1
    v_and_b32 v6, 7, v1
    v_lshrrev_b32 v7, 2, v4
    v_and_b32 v8, 3, v1
    s_mov_b32 s{sMASK}, 0xffff
    ''')
    e(f'''
    v_lshrrev_b32 v9, 1, v6
    v_and_b32 v10, 1, v3
    v_xor_b32 v9, v9, v10
    v_lshlrev_b32 v9, 5, v9
    v_and_b32 v10, 1, v6
    v_lshl_add_u32 v9, v10, 4, v9
    v_lshl_add_u32 v9, v5, 10, v9
    s_lshl_b32 s{sT0}, s{sXCD}, 7
    v_add_u32 v9, s{sT0}, v9
    s_and_b32 s{sT1}, s{sW}, 1
    s_lshl_b32 s{sT1}, s{sT1}, 6
    v_xor_b32 v10, s{sT1}, v9
    v_xor_b32 v11, 64, v10
    s_lshl_b32 s{sT2}, s{sJ}, 16
    s_lshl_b32 s{sT3}, s{sW}, 14
    s_add_u32 s{sT3}, s{sT3}, s{sT2}
    s_sub_u32 s{sT4}, s{sT2}, 8192
    s_cmp_eq_u32 s{sJ}, 0
    s_cselect_b32 s{sT4}, 0x80000000, s{sT4}
    v_add_u32 v12, s{sT4}, v9
    s_lshl_b32 s{sT0}, s{sW}, 11
    ''')
    e('s_waitcnt lgkmcnt(0)')

    def mk_srd(r, p, size):
        e(f's_mov_b32 s{r}, s{p}\ns_mov_b32 s{r + 1}, s{p + 1}\ns_mov_b32 s{r + 2}, {size}\ns_mov_b32 s{r + 3}, 0x20000')
    mk_srd(SRD_K, 10, 0x200000)
    mk_srd(SRD_V, 12, 0x200000)
    e(f'''
    s_cmp_lg_u32 s{sW}, 0
    s_cbranch_scc1 L_nohalo
    s_mov_b32 m0, {PK}
    s_nop 0
    buffer_load_dwordx4 v12, {srd(SRD_K)}, 0 offen {opt.ld_in} lds
L_nohalo:
    ''')
    e(f's_add_u32 m0, s{sT0}, {PK + 1024}')
    e(f's_add_u32 s{sT2}, s{sT3}, 8192')
    e(f'buffer_load_dwordx4 v10, {srd(SRD_K)}, s{sT3} offen {opt.ld_in} lds', tag='pk')
    e(f's_add_u32 m0, s{sT0}, {PK + 2048}')
    mk_srd(SRD_X, 8, 0x200000)
    e(f'buffer_load_dwordx4 v11, {srd(SRD_K)}, s{sT2} offen {opt.ld_in} lds', tag='pk')
    e(f's_add_u32 m0, s{sT0}, {PV}')
    e(f's_add_u32 s{SRD_WS}, s32, {WSBASE}\ns_addc_u32 s{SRD_WS + 1}, s33, 0\ns_mov_b32 s{SRD_WS + 2}, {WSSIZE}\ns_mov_b32 s{SRD_WS + 3}, 0x20000')
    e(f'buffer_load_dwordx4 v10, {srd(SRD_V)}, s{sT3} offen {opt.ld_in} lds', tag='pk')
    e(f's_add_u32 m0, s{sT0}, {PV + 1024}')
    e(f'''
    s_lshl_b32 s{sT1}, s{sXCD}, 9
    s_lshl_b32 s{sT4}, s{sW}, 7
    s_add_u32 s{sT1}, s{sT1}, s{sT4}
    v_lshl_add_u32 v13, v4, 3, s{sT1}
    ''')
    e(f'buffer_load_dwordx4 v10, {srd(SRD_V)}, s{sT2} offen {opt.ld_in} lds', tag='pk')
    e('global_load_dwordx2 v[14:15], v13, s[14:15]')
    e('v_mov_b32 v16, 0')
    e(f'buffer_load_dword v17, v16, {srd(SRD_WS)}, 0 offen sc1')
    e(f'''
    s_and_b32 s{sT0}, s{sW}, 1
    s_cmp_eq_u32 s{sT0}, 0
    s_cselect_b32 s{SRD_W}, s22, s24
    s_cselect_b32 s{SRD_W + 1}, s23, s25
    s_mov_b32 s{SRD_W + 2}, {512 * 3584}
    s_mov_b32 s{SRD_W + 3}, 0x20000
    s_and_b32 s{sT0}, s{sXCD}, 3
    s_lshr_b32 s{sT1}, s{sXCD}, 2
    s_and_b32 s{sT2}, s{sJ}, 3
    s_lshr_b32 s{sT3}, s{sJ}, 2
    s_lshl_b32 s{sB}, s{sT0}, 2
    s_add_u32 s{sB}, s{sB}, s{sT2}
    s_mul_i32 s{sA}, s{sT1}, 7
    s_add_u32 s{sA}, s{sA}, s{sT3}
    s_lshl_b32 s{sROT}, s{sT2}, 1
    s_add_u32 s{sROT}, s{sROT}, s{sT3}
    s_and_b32 s{sROT}, s{sROT}, 7
    s_lshl_b32 s{sRB2}, s{sXCD}, 2
    s_add_u32 s{sRB2}, s{sRB2}, s{sT2}
    s_mov_b32 s{sDB}, s{sT3}
    s_lshl_b32 s{sC0}, s{sXCD}, 6
    s_lshl_b32 s{sT4}, s{sJ}, 1
    s_add_u32 s{sC0}, s{sC0}, s{sT4}
    s_cmp_ge_u32 s{sJ}, 28
    s_cbranch_scc1 L_srole
    ''')

    def late_srds(e):
        e(f's_mov_b32 s{SRD_SSM}, s16\ns_mov_b32 s{SRD_SSM + 1}, s17\ns_mov_b32 s{SRD_SSM + 2}, 0x200000\ns_mov_b32 s{SRD_SSM + 3}, 0x20000')
        e(f's_mov_b32 s{SRD_DN}, s26\ns_mov_b32 s{SRD_DN + 1}, s27\ns_mov_b32 s{SRD_DN + 2}, {1792 * 1024}\ns_mov_b32 s{SRD_DN + 3}, 0x20000')
        e(f's_mov_b32 s{SRD_OUT}, s28\ns_mov_b32 s{SRD_OUT + 1}, s29\ns_mov_b32 s{SRD_OUT + 2}, 0x200000\ns_mov_b32 s{SRD_OUT + 3}, 0x20000')
        e(f'''
        s_mul_i32 s{sWDB}, s{sW}, 12288
        s_lshl_b32 s{sWDA}, s{sW}, 14
        s_add_u32 s{sWDA}, s{sWDA}, {WD_A}
        s_lshr_b32 s{sT0}, s{sDB}, 2
        s_mul_i32 s{sT0}, s{sT0}, 7
        s_and_b32 s{sT1}, s{sJ}, 3
        s_lshl_b32 s{sT1}, s{sT1}, 1
        s_add_u32 s{sT0}, s{sT0}, s{sT1}
        s_lshl_b32 s{sT0}, s{sT0}, 11
        ''')
        for i in range(14):
            e(f's_mov_b32 s{sSTEP + i}, s{sT0}')
            if i < 13:
                e(f's_add_u32 s{sT0}, s{sT0}, 2048\ns_cmp_eq_u32 s{sT0}, {14 * 2048}\ns_cselect_b32 s{sT0}, 0, s{sT0}')

    def code_prefetch(e, lab):
        e(f'''
        s_getpc_b64 s[34:35]
{lab}:
        s_sub_u32 s34, s34, {lab}-{NAME}_kernel
        s_subb_u32 s35, s35, 0
        v_lshlrev_b32 v18, 7, v0
        v_min_u32 v18, L_codeend-{NAME}_kernel-4, v18
        global_load_dword v19, v18, s[34:35]
        ''')

    def p_compute(e):
        e(f'''
        v_lshlrev_b32 v62, 4, v3
        v_add_u32 v62, v62, v7
        v_lshlrev_b32 v62, 7, v62
        v_lshl_add_u32 v62, v8, 3, v62
        v_lshrrev_b32 v63, 1, v7
        v_and_b32 v64, 1, v3
        v_lshl_add_u32 v63, v64, 1, v63
        v_xor_b32 v63, s{sW}, v63
        v_lshl_add_u32 v62, v63, 5, v62
        v_xor_b32 v63, 64, v62
        v_add_u32 v62, {PK}, v62
        v_add_u32 v63, {PK}, v63
        ''')
        e.wait('pk')
        e('s_barrier')
        for n in range(-1, 4):
            reg = 62 if n <= 1 else 63
            e(f'ds_read_b64_tr_b16 v[{20 + 2 * (n + 1)}:{21 + 2 * (n + 1)}], v{reg} offset:{(8 + 4 * n) * 128}')
        for n in range(4):
            e(f'ds_read_b64_tr_b16 v[{30 + 2 * n}:{31 + 2 * n}], v62 offset:{(PV - PK) + 4 * n * 128}')
        e(f'''
        v_alignbit_b32 v40, v14, v14, 16
        v_alignbit_b32 v41, v15, v15, 16
        v_and_b32 v42, 0xffff, v14
        v_bfi_b32 v43, s{sMASK}, v15, v14
        v_and_b32 v44, 0xffff0000, v15
        v_readfirstlane_b32 s{sTAG}, v17
        ''')
        e(f's_add_u32 s{sTAG}, s{sTAG}, 1')
        K = lambda n: f'v{22 + n}'
        for n in range(8):
            e(f'v_dot2_f32_bf16 v{47 + 2 * n}, {K(n)}, v40, 0')
            e(f'v_dot2_f32_bf16 v{46 + 2 * n}, {K(n)}, v42, 0')
        for n in range(8):
            e(f'v_dot2_f32_bf16 v{47 + 2 * n}, {K(n - 1)}, v41, v{47 + 2 * n}')
            e(f'v_dot2_f32_bf16 v{46 + 2 * n}, {K(n - 1)}, v43, v{46 + 2 * n}')
        for n in range(8):
            e(f'v_dot2_f32_bf16 v{46 + 2 * n}, {K(n - 2)}, v44, v{46 + 2 * n}')
        e(f'''
        s_mul_i32 s{sT0}, s{sW}, 2304
        s_add_u32 s{sT0}, s{sT0}, {PO + 96}
        v_mul_u32_u24 v64, 144, v4
        v_lshlrev_b32 v65, 5, v3
        v_sub_u32 v64, v64, v65
        v_add_u32 v64, s{sT0}, v64
        v_mul_u32_u24 v65, 144, v5
        v_lshl_add_u32 v65, v6, 4, v65
        s_sub_u32 s{sT0}, s{sT0}, 96
        v_add_u32 v65, s{sT0}, v65
        ''')
        for n in range(8):
            e(f'v_lshlrev_b32 v{66 + 2 * n}, 16, v{30 + n}')
            e(f'v_and_b32 v{67 + 2 * n}, 0xffff0000, v{30 + n}')
        for n in range(8):
            e(f'v_pk_mul_f32 v[{46 + 2 * n}:{47 + 2 * n}], v[{46 + 2 * n}:{47 + 2 * n}], v[{66 + 2 * n}:{67 + 2 * n}]')
        for m in range(8):
            n = 7 - m
            e(f'v_cvt_pk_bf16_f32 v{20 + m}, v{47 + 2 * n}, v{46 + 2 * n}')
        e('ds_write_b128 v64, v[20:23]', tag='po')
        e('ds_write_b128 v64, v[24:27] offset:16', tag='po')
        e(f'''
        s_lshl_b32 s{sT0}, s{sXCD}, 6
        s_lshl_b32 s{sT1}, s{sW}, 4
        s_add_u32 s{sT0}, s{sT0}, s{sT1}
        s_lshl_b32 s{sT0}, s{sT0}, 12
        s_lshl_b32 s{sT1}, s{sJ}, 7
        s_sub_u32 s{sT0}, s{sT0}, s{sT1}
        s_add_u32 s{sT0}, s{sT0}, {UT + 3968}
        s_add_u32 s{sT1}, s{sT0}, 32768
        v_lshlrev_b32 v66, 12, v5
        v_lshl_add_u32 v66, v6, 4, v66
        ''')
        e.wait('po')
        e('ds_read_b128 v[28:31], v65')
        e(f'ds_read_b128 v[32:35], v65 offset:{8 * 144}')
        e(f'buffer_store_dwordx4 v[28:31], v66, {srd(SRD_WS)}, s{sT0} offen sc1', tag='ust')
        e(f'buffer_store_dwordx4 v[32:35], v66, {srd(SRD_WS)}, s{sT1} offen sc1', tag='ust')

    def set_flag(e, addr_sreg, label, wave0=True):
        if wave0:
            e(f's_cmp_lg_u32 s{sW}, 0\ns_cbranch_scc1 {label}')
        e(f'''
        v_mov_b32 v10, s{addr_sreg}
        v_mov_b32 v11, s{sTAG}
        s_mov_b64 exec, 1
        buffer_store_dword v11, v10, {srd(SRD_WS)}, 0 offen sc1
        s_mov_b64 exec, -1
        ''')
        if wave0:
            e(f'{label}:')

    def untracked(stream_items):
        for it in stream_items:
            if it.kind == 'vmem':
                it.kind = 'vmem_untracked'
        return stream_items

    def flag_block(addr_sreg, label):
        s = Stream()
        set_flag(s, addr_sreg, label, True)
        return untracked(s.l)

    def poll_issue(e, vaddr, vdst):
        e(f'buffer_load_dword v{vdst}, v{vaddr}, {srd(SRD_WS)}, 0 offen sc1')

    def poll_check(e, vaddr, vdst, name):
        e(f'''
        v_cmp_ne_u32 vcc, s{sTAG}, v{vdst}
        s_cbranch_vccz L_{name}_ok
        s_mov_b32 s{sSPIN}, 0
L_{name}_spin:
        s_sleep 1
        ''')
        s = Stream()
        s(f'buffer_load_dword v{vdst}, v{vaddr}, {srd(SRD_WS)}, 0 offen sc1')
        e.add(untracked(s.l))
        s = Stream()
        s('s_waitcnt vmcnt(0)')
        s.l[0].op = 's_waitcnt_untracked'
        e.add(s.l)
        e(f'''
        v_cmp_ne_u32 vcc, s{sTAG}, v{vdst}
        s_add_u32 s{sSPIN}, s{sSPIN}, 1
        s_cmp_ge_u32 s{sSPIN}, 0x40000
        s_cbranch_scc1 L_{name}_ok
        s_cbranch_vccnz L_{name}_spin
L_{name}_ok:
        ''')

    VWD = 72
    VWR = 76

    def wd_addr_setup(e):
        e(f'''
        v_lshrrev_b32 v92, 1, v6
        v_lshrrev_b32 v93, 1, v5
        v_and_b32 v93, 3, v93
        v_xor_b32 v92, v92, v93
        v_lshlrev_b32 v92, 5, v92
        v_and_b32 v93, 1, v6
        v_lshl_add_u32 v92, v93, 4, v92
        v_lshl_add_u32 v92, v5, 10, v92
        s_mul_i32 s{sT0}, s{sW}, {448 * 1024}
        s_lshl_b32 s{sT1}, s{sDB}, 7
        s_add_u32 s{sT0}, s{sT0}, s{sT1}
        v_add_u32 v{VWD}, s{sT0}, v92
        v_add_u32 v{VWD + 1}, {7168}, v{VWD}
        v_add_u32 v{VWD + 2}, {2 * 7168}, v{VWD}
        v_add_u32 v{VWD + 3}, {3 * 7168}, v{VWD}
        v_lshrrev_b32 v92, 1, v3
        v_lshlrev_b32 v92, 4, v92
        v_and_b32 v93, 1, v3
        v_lshl_add_u32 v92, v93, 2, v92
        v_add_u32 v92, v92, v7
        v_lshlrev_b32 v92, 7, v92
        v_lshl_add_u32 v92, v8, 3, v92
        v_lshrrev_b32 v94, 1, v7
        v_lshl_add_u32 v93, v93, 1, v94
        v_lshl_add_u32 v92, v93, 5, v92
        ''')
        for dt in range(4):
            e(f'v_xor_b32 v93, {dt << 5}, v92')
            e(f'v_add_u32 v{VWR + dt}, s{sWDA}, v93')
            e(f'v_add_u32 v{VWR + 4 + dt}, s{sWDB}, v93')

    def wd_buf(i):
        i = i % 7
        if i <= 3:
            return sWDA, VWR, i * 4096
        return sWDB, VWR + 4, (i - 4) * 4096

    def wd_dma(i):
        sm, _, off = wd_buf(i)
        out = []
        for n in range(4):
            s = Stream()
            if n == 0:
                s(f's_add_u32 m0, s{sm}, {off}')
                s(f's_lshl_b32 s{sSO2}, s{sSTEP + i}, 4')
            s(f'buffer_load_dwordx4 v{VWD + n}, {srd(SRD_DN)}, s{sSO2} offen offset:{1024 * n} lds', tag=f'wd{i}')
            out.append(s.l)
        return out

    def wd_reads(i):
        _, vr, off = wd_buf(i)
        out = []
        for dt in range(4):
            for h in range(2):
                a = 16 * i + 4 * dt + 2 * h
                out.append(I(f'ds_read_b64_tr_b16 a[{a}:{a + 1}], v{vr + dt} offset:{off + 1024 * h}', tag=f'wr{i}'))
        return out

    def cv_loads(e):
        e(f'''
        s_lshr_b32 s{sT0}, s{sW}, 1
        s_add_u32 s{sT0}, s{sT0}, s{sC0}
        s_lshl_b32 s{sT1}, s{sT0}, 12
        s_and_b32 s{sT2}, s{sW}, 1
        s_lshl_b32 s{sT2}, s{sT2}, 11
        s_add_u32 s{sT2}, s{sT2}, s{sT1}
        v_lshlrev_b32 v122, 4, v1
        v_add_u32 v123, v4, v3
        v_subrev_u32 v123, 16, v123
        v_lshlrev_b32 v124, 1, v123
        v_add_u32 v124, s{sT1}, v124
        v_cmp_gt_i32 vcc, 0, v123
        v_mov_b32 v125, 0x80000000
        v_cndmask_b32 v124, v124, v125, vcc
        s_lshl_b32 s{sT0}, s{sT0}, 1
        v_mov_b32 v125, s{sT0}
        ''')
        for c in range(2):
            e(f'buffer_load_dwordx4 v[{96 + 8 * c}:{99 + 8 * c}], v122, {srd(SRD_SSM)}, s{sT2} offen offset:{1024 * c} {opt.ld_in}')
            e(f'buffer_load_dwordx4 v[{100 + 8 * c}:{103 + 8 * c}], v122, {srd(SRD_SSM)}, s{sT2} offen offset:{1024 * c + 4} {opt.ld_in}')
            e(f'buffer_load_dword v{112 + c}, v122, {srd(SRD_SSM)}, s{sT2} offen offset:{1024 * c + 20} {opt.ld_in}')
        e(f'buffer_load_ushort v120, v124, {srd(SRD_SSM)}, 0 offen')
        e(f'global_load_ushort v121, v125, s[18:19]')

    def p_poll_setup(e):
        e(f'''
        s_lshl_b32 s{sT0}, s{sXCD}, 12
        s_add_u32 s{sT0}, s{sT0}, {FLAG_P}
        v_and_b32 v126, 31, v1
        v_lshl_add_u32 v126, v126, 7, s{sT0}
        ''')
        poll_issue(e, 126, 127)

    def u_loads(e, name):
        poll_check(e, 126, 127, name)
        e(f'''
        s_lshr_b32 s{sT0}, s{sW}, 1
        s_add_u32 s{sT1}, s{sT0}, s{sC0}
        s_lshl_b32 s{sT1}, s{sT1}, 12
        s_and_b32 s{sT2}, s{sW}, 1
        s_lshl_b32 s{sT3}, s{sT2}, 11
        s_add_u32 s{sT1}, s{sT1}, s{sT3}
        s_add_u32 s{sT4}, s{sT1}, {UT}
        s_add_u32 s{sSOW}, s{sT1}, {YT}
        ''')
        e(f'buffer_load_dwordx4 v[84:87], v122, {srd(SRD_WS)}, s{sT4} offen sc1')
        e(f'buffer_load_dwordx4 v[88:91], v122, {srd(SRD_WS)}, s{sT4} offen offset:1024 sc1')

    G1 = Stream()
    e = G1
    VXD = 24 + 60
    VWDM = 88
    VRW = [96, 104]
    VRX = [112, 116]
    e(f'''
    v_lshrrev_b32 v92, 1, v4
    v_xor_b32 v92, v92, v3
    s_and_b32 s{sT0}, s{sW}, 1
    s_lshl_b32 s{sT1}, s{sT0}, 2
    v_xor_b32 v92, s{sT1}, v92
    v_lshlrev_b32 v92, 5, v92
    v_and_b32 v93, 1, v1
    v_lshl_add_u32 v92, v93, 4, v92
    v_mul_u32_u24 v93, 3584, v3
    v_add_u32 v92, v92, v93
    s_lshr_b32 s{sT1}, s{sW}, 1
    s_mul_i32 s{sT2}, s{sT1}, {32 * 3584}
    s_lshl_b32 s{sT3}, s{sA}, 8
    s_add_u32 s{sT2}, s{sT2}, s{sT3}
    v_add_u32 v{VWDM}, s{sT2}, v92
    v_add_u32 v{VWDM + 1}, {13312}, v{VWDM}
    v_add_u32 v{VWDM + 2}, {2 * 13312}, v{VWDM}
    v_add_u32 v{VWDM + 3}, {3 * 13312}, v{VWDM}
    s_lshl_b32 s{sM0W}, s{sT0}, 14
    s_lshl_b32 s{sT1}, s{sT1}, 13
    s_add_u32 s{sM0W}, s{sM0W}, s{sT1}
    s_lshl_b32 s{sM0X}, s{sW}, 12
    s_add_u32 s{sM0X}, s{sM0X}, 32768
    s_lshl_b32 s{sT0}, s{sB}, 17
    s_lshl_b32 s{sT1}, s{sW}, 15
    s_add_u32 s{sT0}, s{sT0}, s{sT1}
    v_xor_b32 v92, v6, v3
    v_lshlrev_b32 v92, 4, v92
    v_lshl_add_u32 v92, v5, 10, v92
    v_add_u32 v{VXD}, s{sT0}, v92
    v_xor_b32 v93, 64, v{VXD}
    v_add_u32 v{VXD + 1}, {7168}, v93
    v_add_u32 v{VXD + 2}, {2 * 7168}, v{VXD}
    v_add_u32 v{VXD + 3}, {3 * 7168}, v93
    ''')

    def g1_dma(i):
        slot = SLOT[i % 3]
        out = []
        for n in range(12):
            s = Stream()
            if n == 0:
                s(f's_add_u32 s{sT3}, s{sROT}, {i}\ns_and_b32 s{sT3}, s{sT3}, 7')
                s(f's_mul_i32 s{sSOW}, s{sT3}, {64 * 3584}\ns_lshl_b32 s{sSOX}, s{sT3}, 7')
                s(f's_add_u32 m0, s{sM0X}, {slot}' if slot else f's_mov_b32 m0, s{sM0X}')
            if n == 4:
                s(f's_add_u32 m0, s{sM0W}, {slot}' if slot else f's_mov_b32 m0, s{sM0W}')
            if n == 8:
                s(f's_add_u32 m0, s{sM0W}, {slot + 4096}')
                s(f's_add_u32 s{sSOW}, s{sSOW}, {4 * 14336}')
            if n < 4:
                s(f'buffer_load_dwordx4 v{VXD + n}, {srd(SRD_X)}, s{sSOX} offen offset:{1024 * n} {opt.ld_in} lds', tag=f'c{i}')
            else:
                s(f'buffer_load_dwordx4 v{VWDM + (n & 3)}, {srd(SRD_W)}, s{sSOW} offen offset:{1024 * (n & 3)} {opt.ld_in} lds', tag=f'c{i}')
            out.append(s.l)
        return out

    for i in range(2):
        for grp in g1_dma(i):
            e.add(grp)
    code_prefetch(e, 'L_pcg')
    late_srds(e)
    e(f'''
    v_and_b32 v92, 1, v3
    v_lshrrev_b32 v93, 1, v3
    v_lshl_add_u32 v93, v93, 3, v7
    v_lshlrev_b32 v93, 8, v93
    v_lshl_add_u32 v93, v92, 14, v93
    v_lshl_add_u32 v93, v8, 3, v93
    v_lshlrev_b32 v92, 2, v92
    v_xor_b32 v92, v92, v7
    v_lshl_add_u32 v{VRW[0]}, v92, 5, v93
    ''')
    for t in range(1, 8):
        e(f'v_xor_b32 v{VRW[0] + t}, {t << 5}, v{VRW[0]}')
    for t in range(8):
        e(f'v_add_u32 v{VRW[1] + t}, {SLOT[2]}, v{VRW[0] + t}')
    e(f'''
    v_and_b32 v92, 31, v1
    v_lshrrev_b32 v93, 1, v92
    v_and_b32 v93, 7, v93
    v_lshrrev_b32 v94, 5, v1
    v_xor_b32 v93, v93, v94
    v_lshlrev_b32 v93, 4, v93
    v_lshl_add_u32 v93, v92, 7, v93
    v_add_u32 v{VRX[0]}, s{sM0X}, v93
    ''')
    for ks in range(1, 4):
        e(f'v_xor_b32 v{VRX[0] + ks}, {ks << 5}, v{VRX[0]}')
    for ks in range(4):
        e(f'v_add_u32 v{VRX[1] + ks}, {SLOT[2]}, v{VRX[0] + ks}')
    stamp(e, 'issued')
    p_compute(e)
    stamp(e, 'Pdone')
    wd_addr_setup(e)

    ACC = 128
    NB = opt.NB
    AF = 256 - 4 * NB - 16
    BF = 256 - 16
    mains = []
    reads = {}
    for i in range(8):
        slot = SLOT[i % 3]
        st = 1 if i % 3 == 2 else 0
        imm = 0 if st else slot
        rl = []
        for ks in range(4):
            bq = BF + 4 * ((4 * i + ks) % 4)
            rl.append((I(f'ds_read_b128 a[{bq}:{bq + 3}], v{VRX[st] + ks} offset:{imm}', tag=f'r{i}'), 32 * i + 8 * ks, 'B'))
            for t in range(8):
                m = 32 * i + 8 * ks + t
                aq = AF + 4 * (m % NB)
                for h in range(2):
                    rl.append((I(f'ds_read_b64_tr_b16 a[{aq + 2 * h}:{aq + 2 * h + 1}], v{VRW[st] + t} offset:{imm + ks * 4096 + h * 1024}', tag=f'r{i}'), m, 'A'))
                c = '0' if (i == 0 and ks == 0) else f'v[{ACC + 16 * t}:{ACC + 16 * t + 15}]'
                mains.append(I(f'v_mfma_f32_32x32x16_bf16 v[{ACC + 16 * t}:{ACC + 16 * t + 15}], a[{aq}:{aq + 3}], a[{bq}:{bq + 3}], {c}'))
        reads[i] = rl
    gaps = {}
    D, G = opt.D, opt.G

    def put(g, items):
        gaps.setdefault(g, [])
        gaps[g].extend(items if isinstance(items, list) else [items])

    pre = Stream()
    pre.wait('c0', 'LGKM0')
    pre('s_barrier')
    stamp(pre, 'slot0')
    put(-1, pre.l)
    for i in range(8):
        lo = 32 * i - D
        hi = 32 * (i + 1) - D - G
        rl = reads[i]
        n = len(rl)
        for jx, (ins, m, kind) in enumerate(rl):
            g = max(-1, lo + (jx * (hi - lo + 1)) // n)
            lim = (m - NB) if kind == 'A' else (m - 32 + 7)
            g = max(g, lim)
            assert g < m, (i, jx, g, m)
            assert g <= 32 * (i + 1) - D - 1 or i == 7
            put(g, ins)
        if i < 7:
            b = Stream()
            b.wait(f'c{i + 1}', 'LGKM0')
            b('s_barrier')
            g = 32 * (i + 1) - D
            gaps.setdefault(g, [])
            gaps[g] = b.l + gaps[g]
    for i in range(6):
        lo = max(32 * i - D + 1, 0)
        spread(gaps, g1_dma(i + 2), lo, lo + 27)
    s = Stream()
    s(f's_lshl_b32 s{sT0}, s{sXCD}, 12\ns_lshl_b32 s{sT1}, s{sJ}, 7\ns_add_u32 s{sT0}, s{sT0}, s{sT1}\ns_add_u32 s{sT0}, s{sT0}, {FLAG_P}')
    put(64 - D + 1, s.l + flag_block(sT0, 'L_pf'))
    spread(gaps, wd_dma(0) + wd_dma(1) + wd_dma(2) + wd_dma(3), 32 * 6 - D + 1, 32 * 6 - D + 30)
    spread(gaps, wd_dma(4) + wd_dma(5) + wd_dma(6), 32 * 7 - D + 1, 32 * 7 - D + 28)
    s = Stream()
    s(f'''
    s_and_b32 s{sT0}, s{sXCD}, 3
    s_bfe_u32 s{sT1}, s{sJ}, 0x10001
    s_lshl_b32 s{sT1}, s{sT1}, 2
    s_add_u32 s{sT0}, s{sT0}, s{sT1}
    s_lshl_b32 s{sT0}, s{sT0}, 2
    s_and_b32 s{sT1}, s{sJ}, 1
    s_lshl_b32 s{sT1}, s{sT1}, 1
    s_add_u32 s{sT0}, s{sT0}, s{sT1}
    s_lshr_b32 s{sT1}, s{sJ}, 2
    s_lshl_b32 s{sT1}, s{sT1}, 1
    s_and_b32 s{sT2}, s{sXCD}, 4
    s_lshl_b32 s{sT2}, s{sT2}, 2
    s_add_u32 s{sT1}, s{sT1}, s{sT2}
    v_mov_b32 v20, s{sT0}
    v_mov_b32 v21, s{sT1}
    v_and_b32 v22, 1, v1
    v_and_b32 v23, 2, v1
    v_cmp_eq_u32 vcc, 0, v23
    v_cndmask_b32 v20, v21, v20, vcc
    v_add_u32 v20, v20, v22
    v_lshlrev_b32 v20, 7, v20
    v_add_u32 v20, {FLAG_S}, v20
    ''')
    spread(gaps, [[x] for x in s.l], 32 * 4, 32 * 4 + 24)
    s = Stream()
    poll_issue(s, 20, 21)
    put(32 * 5 + 8, s.l)
    s = Stream()
    s(f'''
    v_and_b32 v22, 31, v1
    s_lshl_b32 s{sT0}, s{sB}, 10
    s_lshl_b32 s{sT1}, s{sW}, 8
    s_add_u32 s{sT0}, s{sT0}, s{sT1}
    s_add_u32 s{sT0}, s{sT0}, {STATS}
    v_lshl_add_u32 v22, v22, 3, s{sT0}
    v_and_b32 v23, 1, v3
    v_mul_u32_u24 v23, {1792 * 8}, v23
    v_lshl_add_u32 v23, v4, 3, v23
    s_lshl_b32 s{sT0}, s{sA}, 10
    s_add_u32 s{sT0}, s{sT0}, {CS}
    v_add_u32 v23, s{sT0}, v23
    v_cmp_lt_u32 vcc, 31, v1
    v_mov_b32 v24, 0x80000000
    v_cndmask_b32 v23, v23, v24, vcc
    ''')
    for t in range(8):
        s(f'v_mov_b32 v{34 + 4 * t}, 0\nv_mov_b32 v{35 + 4 * t}, 0')
    spread(gaps, [[x] for x in s.l], 32 * 5 + 9, 32 * 6 - 1)
    s = Stream()
    poll_check(s, 20, 21, 'sf')
    s(f'buffer_load_dwordx2 v[26:27], v22, {srd(SRD_WS)}, 0 offen sc1')
    put(32 * 6 + 2, s.l)
    s = Stream()
    for t in range(8):
        s(f'buffer_load_dwordx2 v[{32 + 4 * t}:{33 + 4 * t}], v23, {srd(SRD_WS)}, 0 offen offset:{128 * t} sc1')
    spread(gaps, [[x] for x in s.l], 32 * 6 + 4, 32 * 6 + 26)
    s = Stream()
    s(f'''
    v_rsq_f32 v24, v27
    v_sub_f32 v28, 0, v26
    v_cvt_pk_bf16_f32 v29, v28, v28
    v_mul_f32 v24, 0xbfb8aa3b, v24
    v_lshlrev_b32 v29, 16, v29
    v_mov_b32 v22, v27
    v_sub_f32 v29, v28, v29
    v_mov_b32 v25, v24
    v_cvt_pk_bf16_f32 v28, v28, v29
    v_mov_b32 v23, v27
    v_mov_b32 v29, v28
    v_mov_b32 v30, v28
    v_mov_b32 v31, v28
    ''')
    spread(gaps, [[x] for x in s.l], 32 * 7 + 8, 32 * 7 + 24)
    s = Stream()
    p_poll_setup(s)
    put(32 * 7 + 2, s.l)
    e.add(weave(mains, gaps))
    for t in range(8):
        e(f'v_mfma_f32_32x32x16_bf16 v[{ACC + 16 * t}:{ACC + 16 * t + 15}], v[{32 + 4 * t}:{35 + 4 * t}], v[28:31], v[{ACC + 16 * t}:{ACC + 16 * t + 15}]')
    stamp(e, 'G1loop')
    cv_loads(e)
    u_loads(e, 'pf')
    e(f'''
    s_lshl_b32 s{sT0}, s{sB}, 2
    s_add_u32 s{sT0}, s{sT0}, s{sW}
    s_mul_i32 s{sT0}, s{sT0}, 112
    s_lshl_b32 s{sT1}, s{sA}, 3
    s_add_u32 s{sT0}, s{sT0}, s{sT1}
    s_lshl_b32 s{sT0}, s{sT0}, 10
    s_add_u32 s{sHB}, s{sT0}, {HH}
    s_add_u32 s{sHB + 1}, s{sHB}, 4096
    ''')
    for t in range(8):
        A = ACC + 16 * t
        T = 32 + 16 * (t & 1)
        O = 64 + 4 * (t & 1)
        for p in range(4):
            e(f'v_pk_mul_f32 v[{T + 2 * p}:{T + 2 * p + 1}], v[{A + 2 * p}:{A + 2 * p + 1}], v[24:25]')
        for k in range(8):
            e(f'v_exp_f32 v{T + k}, v{T + k}')
        for p in range(4):
            e(f'v_pk_mul_f32 v[{T + 8 + 2 * p}:{T + 9 + 2 * p}], v[{A + 2 * p}:{A + 2 * p + 1}], v[{A + 8 + 2 * p}:{A + 9 + 2 * p}]')
        for p in range(4):
            e(f'v_pk_fma_f32 v[{T + 2 * p}:{T + 2 * p + 1}], v[{T + 2 * p}:{T + 2 * p + 1}], v[22:23], v[22:23]')
        for k in range(8):
            e(f'v_rcp_f32 v{T + k}, v{T + k}')
        for p in range(4):
            e(f'v_pk_mul_f32 v[{T + 8 + 2 * p}:{T + 9 + 2 * p}], v[{T + 8 + 2 * p}:{T + 9 + 2 * p}], v[{T + 2 * p}:{T + 2 * p + 1}]')
        for p in range(4):
            e(f'v_cvt_pk_bf16_f32 v{O + p}, v{T + 8 + 2 * p}, v{T + 9 + 2 * p}')
        e(f'buffer_store_dwordx4 v[{O}:{O + 3}], v122, {srd(SRD_WS)}, s{sHB + (t >> 2)} offen offset:{1024 * (t & 3)} sc1', tag='hst')
    e(f'''
    s_lshl_b32 s{sT0}, s{sB}, 1
    s_lshr_b32 s{sT1}, s{sW}, 1
    s_add_u32 s{sT0}, s{sT0}, s{sT1}
    s_lshl_b32 s{sT0}, s{sT0}, 5
    s_lshl_b32 s{sT1}, s{sA}, 1
    s_add_u32 s{sT0}, s{sT0}, s{sT1}
    s_and_b32 s{sT1}, s{sW}, 1
    s_add_u32 s{sT0}, s{sT0}, s{sT1}
    s_lshl_b32 s{sT0}, s{sT0}, 7
    s_add_u32 s{sHB}, s{sT0}, {FLAG_H}
    ''')
    stamp(e, 'G1epi')

    T = Stream()
    e = T
    e('L_tail:')
    e.wait('LGKM0')
    e('s_barrier')
    e(f'''
    s_lshr_b32 s{sT0}, s{sW}, 1
    s_and_b32 s{sT2}, s{sW}, 1
    s_lshl_b32 s{sT3}, s{sT2}, 11
    s_mul_i32 s{sT0}, s{sT0}, {CVCH}
    s_add_u32 s{sT0}, s{sT0}, {CV}
    s_add_u32 s{sT1}, s{sT0}, s{sT3}
    v_add_u32 v128, s{sT1}, v122
    v_mul_u32_u24 v129, 4160, v3
    v_lshl_add_u32 v129, v4, 1, v129
    v_add_u32 v129, s{sT0}, v129
    v_add_u32 v130, s{sT0}, v122
    v_mov_b32 v132, 0
    v_mov_b32 v133, 0
    v_mov_b32 v134, 0
    v_mov_b32 v135, 0
    ''')
    e(f'ds_write_b128 v130, v[132:135] offset:{CVR + 4096}', tag='cvw')
    e(f'ds_write_b16 v129, v120', tag='cvw')
    for c in range(2):
        L0, L1, L2 = 96 + 8 * c, 100 + 8 * c, 112 + c
        t1, t3 = 136 + 8 * c, 140 + 8 * c
        e(f'ds_write_b128 v128, v[{L0}:{L0 + 3}] offset:{32 + 1024 * c}', tag='cvw')
        e(f'ds_write_b128 v128, v[{L1}:{L1 + 3}] offset:{2 * 4160 + 32 + 1024 * c}', tag='cvw')
        for n in range(4):
            e(f'v_alignbit_b32 v{t1 + n}, v{L1 + n}, v{L0 + n}, 16')
        e(f'ds_write_b128 v128, v[{t1}:{t1 + 3}] offset:{4160 + 32 + 1024 * c}', tag='cvw')
        for n in range(4):
            hi = f'v{L1 + n + 1}' if n < 3 else f'v{L2}'
            e(f'v_alignbit_b32 v{t3 + n}, {hi}, v{L1 + n}, 16')
        e(f'ds_write_b128 v128, v[{t3}:{t3 + 3}] offset:{3 * 4160 + 32 + 1024 * c}', tag='cvw')
    e(f'ds_write_b128 v128, v[84:87] offset:{CVR}', tag='cvw')
    e(f'ds_write_b128 v128, v[88:91] offset:{CVR + 1024}', tag='cvw')
    e(f'''
    v_add_u32 v152, 1, v4
    v_and_b32 v153, 3, v152
    v_mul_u32_u24 v153, 4160, v153
    v_and_b32 v152, 28, v152
    v_lshl_add_u32 v153, v152, 1, v153
    v_lshl_add_u32 v153, v3, 4, v153
    s_lshl_b32 s{sT3}, s{sT2}, 8
    s_add_u32 s{sT3}, s{sT3}, s{sT0}
    v_add_u32 v70, s{sT3}, v153
    v_lshlrev_b32 v153, 5, v4
    v_lshlrev_b32 v154, 4, v3
    v_sub_u32 v154, v154, v153
    s_add_u32 s{sT3}, s{sT3}, {CVR + 480}
    v_add_u32 v71, s{sT3}, v154
    v_lshlrev_b32 v154, 3, v3
    v_add_u32 v154, v154, v153
    s_lshl_b32 s{sT3}, s{sT2}, 11
    s_sub_u32 s{sT3}, s{sT0}, s{sT3}
    s_add_u32 s{sT3}, s{sT3}, {CVR + 4088 - 1536}
    v_sub_u32 v69, s{sT3}, v154
    v_lshlrev_b32 v121, 16, v121
    v_and_b32 v154, 1, v3
    v_lshl_add_u32 v153, v154, 9, v153
    v_lshrrev_b32 v154, 1, v3
    v_lshl_add_u32 v68, v154, 4, v153
    ''')
    e.wait('cvw')
    e('s_barrier')
    stamp(e, 'cvsetup')
    CA = 32
    FR = [128, 192]

    def cv_reads(mu):
        f = FR[mu & 1]
        out = []
        for k in range(8):
            out.append(I(f'ds_read_b64 v[{f + 4 * k}:{f + 4 * k + 1}], v70 offset:{512 * k + 64 * mu}'))
            out.append(I(f'ds_read_b64 v[{f + 4 * k + 2}:{f + 4 * k + 3}], v70 offset:{512 * k + 64 * mu + 8}'))
            out.append(I(f'ds_read_b128 v[{f + 32 + 4 * k}:{f + 32 + 4 * k + 3}], v71 offset:{3584 - 512 * k + 64 * mu}'))
        return out
    mains = []
    for mu in range(4):
        f = FR[mu & 1]
        for nt in range(8):
            for mp in range(nt + 1):
                c = '0' if (mu == 0 and mp == 0) else f'v[{CA + 4 * nt}:{CA + 4 * nt + 3}]'
                mains.append(I(f'v_mfma_f32_16x16x32_bf16 v[{CA + 4 * nt}:{CA + 4 * nt + 3}], v[{f + 4 * mp}:{f + 4 * mp + 3}], v[{f + 32 + 4 * (nt - mp)}:{f + 32 + 4 * (nt - mp) + 3}], {c}'))
    gaps = {}
    gaps[-1] = cv_reads(0)
    for mu in range(3):
        spread(gaps, cv_reads(mu + 1), 36 * mu + 1, 36 * mu + 30)
    for i in range(7):
        g0 = 2 + 7 * i
        gaps.setdefault(g0, []).append(WAIT(f'wd{i}'))
        spread(gaps, wd_reads(i), g0, g0 + 5)
        d = wd_dma(7 + i)
        d[0] = [WAIT(f'wr{i}')] + d[0]
        spread(gaps, d, g0 + 9, g0 + 15)
    s = Stream()
    s.wait('hst')
    set_flag(s, sHB, None, False)
    gaps.setdefault(40, []).extend(s.l)
    for i in range(7):
        g0 = 80 + 9 * i
        gaps.setdefault(g0, []).append(WAIT(f'wd{7 + i}'))
        spread(gaps, wd_reads(7 + i), g0, g0 + 8)
    s = Stream()
    s(f'''
    s_lshl_b32 s{sT0}, s{sRB2}, 12
    s_add_u32 s{sT0}, s{sT0}, {FLAG_H}
    v_min_u32 v126, 27, v1
    v_lshl_add_u32 v126, v126, 7, s{sT0}
    ''')
    poll_issue(s, 126, 127)
    gaps.setdefault(130, []).extend(s.l)
    e.add(weave(mains, gaps))
    stamp(e, 'cvmain')
    e(f'''
    s_nop 7
    s_and_b32 s{sT0}, s{sW}, 1
    s_cmp_eq_u32 s{sT0}, 0
    s_cbranch_scc1 L_noswap
    ''')
    for k in range(16):
        e(f'v_swap_b32 v{CA + k}, v{CA + 16 + k}')
    e('L_noswap:')
    e(f'''
    s_xor_b32 s{sT1}, s{sW}, 1
    s_lshl_b32 s{sT1}, s{sT1}, 14
    s_add_u32 s{sT1}, s{sT1}, {WD_A}
    v_add_u32 v72, s{sWDA}, v122
    v_add_u32 v73, s{sT1}, v122
    ''')
    e.wait('wr7')
    for k in range(4):
        e(f'ds_write_b128 v72, v[{CA + 16 + 4 * k}:{CA + 19 + 4 * k}] offset:{1024 * k}', tag='cx')
    for k in range(4):
        e(f'ds_read_b64 v[{96 + 2 * k}:{97 + 2 * k}], v69 offset:{1536 - 512 * k}')
    e.wait('cx')
    e('s_barrier')
    for k in range(4):
        e(f'ds_read_b128 v[{CA + 16 + 4 * k}:{CA + 19 + 4 * k}], v73 offset:{1024 * k}')
    poll_check(e, 126, 127, 'hf')
    stamp(e, 'hflag')
    HR = 128
    NH = 24
    e(f'''
    v_lshrrev_b32 v9, 1, v3
    v_lshlrev_b32 v9, 10, v9
    v_and_b32 v64, 1, v3
    v_lshl_add_u32 v9, v64, 9, v9
    v_lshl_add_u32 v9, v4, 4, v9
    s_mul_i32 s{sHL}, s{sRB2}, {2 * 112 * 1024}
    s_mul_i32 s{sT0}, s{sW}, {28 * 1024}
    s_add_u32 s{sHL}, s{sHL}, s{sT0}
    s_add_u32 s{sHL}, s{sHL}, {HH}
    ''')
    sRT = [13, 20, 21, 22]
    sRW = [23, 24, 25, 30]
    for rho in range(4):
        e(f'''
        s_add_u32 s{sT0}, s{sDB}, {rho}
        s_and_b32 s{sT0}, s{sT0}, 3
        s_lshl_b32 s{sRW[rho]}, s{sT0}, 4
        s_lshr_b32 s{sT1}, s{sT0}, 1
        s_mul_i32 s{sT1}, s{sT1}, {112 * 1024}
        s_and_b32 s{sT0}, s{sT0}, 1
        s_lshl_b32 s{sT0}, s{sT0}, 8
        s_add_u32 s{sT0}, s{sT0}, s{sT1}
        s_add_u32 s{sRT[rho]}, s{sT0}, s{sHL}
        ''')

    def h_load(n):
        rho, i = divmod(n, 14)
        r = HR + 4 * (n % NH)
        s = Stream()
        s(f's_add_u32 s{sSO2}, s{sRT[rho]}, s{sSTEP + i}')
        s(f'buffer_load_dwordx4 v[{r}:{r + 3}], v9, {srd(SRD_WS)}, s{sSO2} offen sc1')
        return s.l
    for n in range(NH):
        e.add(h_load(n))
    for k in range(4):
        a = CA + 4 * k
        e(f'v_pk_add_f32 v[{a}:{a + 1}], v[{a}:{a + 1}], v[{a + 16}:{a + 17}]')
        e(f'v_pk_add_f32 v[{a + 2}:{a + 3}], v[{a + 2}:{a + 3}], v[{a + 18}:{a + 19}]')
        d0, d1 = 96 + 2 * k, 97 + 2 * k
        e(f'''
        v_and_b32 v104, 0xffff0000, v{d1}
        v_lshlrev_b32 v105, 16, v{d1}
        v_and_b32 v106, 0xffff0000, v{d0}
        v_lshlrev_b32 v107, 16, v{d0}
        v_fmac_f32 v{a}, v121, v104
        v_fmac_f32 v{a + 1}, v121, v105
        v_fmac_f32 v{a + 2}, v121, v106
        v_fmac_f32 v{a + 3}, v121, v107
        v_cvt_pk_bf16_f32 v{108 + 2 * k}, v{a}, v{a + 1}
        v_cvt_pk_bf16_f32 v{109 + 2 * k}, v{a + 2}, v{a + 3}
        ''')
    for ip in range(2):
        b = 108 + 4 * ip
        e(f'v_permlane16_swap_b32 v{b}, v{b + 2}')
        e(f'v_permlane16_swap_b32 v{b + 1}, v{b + 3}')
        e(f'buffer_store_dwordx4 v[{b}:{b + 3}], v68, {srd(SRD_WS)}, s{sSOW} offen offset:{1024 * ip} sc1', tag='yst')
    stamp(e, 'cvdone')
    GA = [32, 48]
    OO = 64
    XX = 80
    s = Stream()
    s(f'''
    s_lshl_b32 s{sT0}, s{sRB2}, 16
    s_lshl_b32 s{sT1}, s{sDB}, 7
    s_add_u32 s{sT0}, s{sT0}, s{sT1}
    s_lshl_b32 s{sT1}, s{sW}, 5
    s_add_u32 s{sT0}, s{sT0}, s{sT1}
    v_lshlrev_b32 v120, 10, v4
    v_lshl_add_u32 v120, v3, 3, v120
    v_add_u32 v120, s{sT0}, v120
    s_lshl_b32 s{sT0}, s{sRB2}, 9
    s_add_u32 s{sT0}, s{sT0}, {STATS}
    v_lshl_add_u32 v123, v4, 3, s{sT0}
    s_lshl_b32 s{sT0}, s{sW}, 10
    s_add_u32 s{sT0}, s{sT0}, {RED}
    v_add_u32 v124, s{sT0}, v122
    s_lshl_b32 s{sT0}, s{sW}, 12
    s_add_u32 s{sT0}, s{sT0}, {RED}
    v_add_u32 v125, s{sT0}, v122
    s_lshl_b32 s{sT0}, s{sDB}, 12
    s_add_u32 s{sT0}, s{sT0}, {FLAG_Y}
    v_and_b32 v126, 31, v1
    v_lshl_add_u32 v126, v126, 7, s{sT0}
    ''')
    g2_setup = s.l
    mains = []
    for rho in range(4):
        for i in range(14):
            n = 14 * rho + i
            r = HR + 4 * (n % NH)
            for dt in range(4):
                a = GA[rho & 1] + 4 * dt
                c = '0' if i == 0 else f'v[{a}:{a + 3}]'
                mains.append(I(f'v_mfma_f32_16x16x32_bf16 v[{a}:{a + 3}], a[{16 * i + 4 * dt}:{16 * i + 4 * dt + 3}], v[{r}:{r + 3}], {c}'))
    gaps = {}
    spread(gaps, [[x] for x in g2_setup], 0, 20)
    for n in range(NH, 56):
        gaps.setdefault(4 * (n - NH) + 3, []).extend(h_load(n))
    s = Stream()
    for rho in range(4):
        s(f's_lshl_b32 s{sT0}, s{sRW[rho]}, 10')
        s(f'buffer_load_dwordx2 v[{XX + 2 * rho}:{XX + 2 * rho + 1}], v120, {srd(SRD_X)}, s{sT0} offen')
        s(f's_lshl_b32 s{sT1}, s{sRW[rho]}, 3')
        s(f'buffer_load_dwordx2 v[{88 + 2 * rho}:{89 + 2 * rho}], v123, {srd(SRD_WS)}, s{sT1} offen sc1')
    spread(gaps, [s.l[0:2], s.l[2:4], s.l[4:6], s.l[6:8], s.l[8:10], s.l[10:12], s.l[12:14], s.l[14:16]], 22, 50)
    s = Stream()
    s.wait('yst')
    s('s_barrier')
    s(f's_lshl_b32 s{sT2}, s{sXCD}, 12\ns_lshl_b32 s{sT3}, s{sJ}, 7\ns_add_u32 s{sT2}, s{sT2}, s{sT3}\ns_add_u32 s{sT2}, s{sT2}, {FLAG_Y}')
    gaps.setdefault(28, []).extend(s.l + flag_block(sT2, 'L_yf'))

    def red_write(rho):
        out = []
        for dt in range(4):
            a = GA[rho & 1] + 4 * dt
            out.append(I(f'ds_write_b128 v124, v[{a}:{a + 3}] offset:{16384 * (rho & 1) + 4096 * dt}', tag=f'rw{rho}'))
        return out

    def red_read(rho, base):
        return [I(f'ds_read_b128 v[{base + 4 * sw}:{base + 4 * sw + 3}], v125 offset:{16384 * (rho & 1) + 1024 * sw}') for sw in range(4)]

    def red_sum(rho, base):
        o = OO + 4 * rho
        s = Stream()
        s(f'''
        v_pk_add_f32 v[{base}:{base + 1}], v[{base}:{base + 1}], v[{base + 4}:{base + 5}]
        v_pk_add_f32 v[{base + 2}:{base + 3}], v[{base + 2}:{base + 3}], v[{base + 6}:{base + 7}]
        v_pk_add_f32 v[{base + 8}:{base + 9}], v[{base + 8}:{base + 9}], v[{base + 12}:{base + 13}]
        v_pk_add_f32 v[{base + 10}:{base + 11}], v[{base + 10}:{base + 11}], v[{base + 14}:{base + 15}]
        v_pk_add_f32 v[{o}:{o + 1}], v[{base}:{base + 1}], v[{base + 8}:{base + 9}]
        v_pk_add_f32 v[{o + 2}:{o + 3}], v[{base + 2}:{base + 3}], v[{base + 10}:{base + 11}]
        ''')
        return s.l

    RT = 8
    RT = 10

    def z_prep(rho):
        s = Stream()
        z = 104 + 4 * rho
        x0, x1, mu_, cc, y0, y1 = XX + 2 * rho, XX + 2 * rho + 1, 88 + 2 * rho, 89 + 2 * rho, 96 + 2 * rho, 97 + 2 * rho
        s(f'''
        v_rsq_f32 v{cc}, v{cc}
        v_lshlrev_b32 v{z}, 16, v{x0}
        v_and_b32 v{z + 1}, 0xffff0000, v{x0}
        v_lshlrev_b32 v{z + 2}, 16, v{x1}
        v_and_b32 v{z + 3}, 0xffff0000, v{x1}
        v_sub_f32 v{z}, v{z}, v{mu_}
        v_sub_f32 v{z + 1}, v{z + 1}, v{mu_}
        v_sub_f32 v{z + 2}, v{z + 2}, v{mu_}
        v_sub_f32 v{z + 3}, v{z + 3}, v{mu_}
        v_lshlrev_b32 v26, 16, v{y0}
        v_and_b32 v27, 0xffff0000, v{y0}
        v_lshlrev_b32 v28, 16, v{y1}
        v_and_b32 v29, 0xffff0000, v{y1}
        v_mul_f32 v{z}, v{z}, v{cc}
        v_mul_f32 v{z + 1}, v{z + 1}, v{cc}
        v_mul_f32 v{z + 2}, v{z + 2}, v{cc}
        v_mul_f32 v{z + 3}, v{z + 3}, v{cc}
        v_mul_f32 v{z}, v{z}, v26
        v_mul_f32 v{z + 1}, v{z + 1}, v27
        v_mul_f32 v{z + 2}, v{z + 2}, v28
        v_mul_f32 v{z + 3}, v{z + 3}, v29
        ''')
        return s.l

    def final(rho):
        s = Stream()
        o, z, x0, x1 = OO + 4 * rho, 104 + 4 * rho, XX + 2 * rho, XX + 2 * rho + 1
        t = 240
        for r in range(4):
            s(f'v_mul_f32 v{t + r}, 0xbfb8aa3b, v{o + r}')
        for r in range(4):
            s(f'v_exp_f32 v{t + r}, v{t + r}')
        for r in range(4):
            s(f'v_mul_f32 v{o + r}, v{o + r}, v{z + r}')
        for r in range(4):
            s(f'v_add_f32 v{t + r}, 1.0, v{t + r}')
        for r in range(4):
            s(f'v_rcp_f32 v{t + r}, v{t + r}')
        s(f'''
        v_lshlrev_b32 v{t + 4}, 16, v{x0}
        v_and_b32 v{t + 5}, 0xffff0000, v{x0}
        v_lshlrev_b32 v{t + 6}, 16, v{x1}
        v_and_b32 v{t + 7}, 0xffff0000, v{x1}
        ''')
        for r in range(4):
            s(f'v_fmac_f32 v{t + 4 + r}, v{o + r}, v{t + r}')
        s(f'''
        v_cvt_pk_bf16_f32 v{t + 8}, v{t + 4}, v{t + 5}
        v_cvt_pk_bf16_f32 v{t + 9}, v{t + 6}, v{t + 7}
        s_lshl_b32 s{sT0}, s{sRW[rho]}, 10
        buffer_store_dwordx2 v[{t + 8}:{t + 9}], v120, {srd(SRD_OUT)}, s{sT0} offen {opt.out_st}
        ''')
        return s.l

    for rho in range(3):
        g = 56 * (rho + 1)
        spread(gaps, red_write(rho), g + 4, g + 7)
        s = Stream()
        s.wait(f'rw{rho}')
        s('s_barrier')
        gaps.setdefault(g + 11, []).extend(s.l)
        spread(gaps, red_read(rho, RT), g + 12, g + 15)
        spread(gaps, red_sum(rho, RT), g + 20, g + 25)
    s = Stream()
    poll_issue(s, 126, 127)
    gaps.setdefault(56 + 40, []).extend(s.l)
    s = Stream()
    poll_check(s, 126, 127, 'yf')
    s(f'''
    s_lshl_b32 s{sT0}, s{sDB}, 6
    s_lshl_b32 s{sT1}, s{sW}, 4
    s_add_u32 s{sT0}, s{sT0}, s{sT1}
    s_lshl_b32 s{sT0}, s{sT0}, 12
    s_lshl_b32 s{sT1}, s{sRB2}, 7
    s_add_u32 s{sT0}, s{sT0}, s{sT1}
    s_add_u32 s{sT0}, s{sT0}, {YT}
    s_add_u32 s{sT1}, s{sT0}, 32768
    v_lshlrev_b32 v30, 12, v5
    v_lshl_add_u32 v30, v6, 4, v30
    buffer_load_dwordx4 v[244:247], v30, {srd(SRD_WS)}, s{sT0} offen sc1
    buffer_load_dwordx4 v[248:251], v30, {srd(SRD_WS)}, s{sT1} offen sc1
    ''')
    gaps.setdefault(112 - 4, []).extend(s.l)
    s = Stream()
    s(f'''
    s_mul_i32 s{sT0}, s{sW}, 2560
    s_add_u32 s{sT0}, s{sT0}, {YS}
    v_mul_u32_u24 v30, 160, v5
    v_lshl_add_u32 v30, v6, 4, v30
    v_add_u32 v30, s{sT0}, v30
    v_lshl_add_u32 v31, v3, 2, v7
    v_mul_u32_u24 v31, 160, v31
    v_and_b32 v26, 3, v1
    v_lshl_add_u32 v31, v26, 3, v31
    v_add_u32 v31, s{sT0}, v31
    ''')
    spread(gaps, [[x] for x in s.l], 112 + 26, 112 + 35)
    s = Stream()
    s('ds_write_b128 v30, v[244:247]', tag='ys')
    s(f'ds_write_b128 v30, v[248:251] offset:{8 * 160}', tag='ys')
    spread(gaps, [[x] for x in s.l], 112 + 40, 112 + 41)
    s = Stream()
    s.wait('ys')
    for rho in range(4):
        s(f's_lshl_b32 s{sT0}, s{sRW[rho]}, 1\nv_add_u32 v26, s{sT0}, v31')
        s(f'ds_read_b64_tr_b16 v[{96 + 2 * rho}:{97 + 2 * rho}], v26')
    gaps.setdefault(112 + 46, []).extend(s.l)
    work = z_prep(0) + final(0) + z_prep(1) + final(1)
    spread(gaps, [[x] for x in work], 112 + 50, 168 + 27)
    work = z_prep(2) + final(2) + z_prep(3)
    spread(gaps, [[x] for x in work], 168 + 28, 168 + 55)
    e.add(weave(mains, gaps))
    stamp(e, 'G2main')
    e.add(red_write(3))
    e.wait('rw3')
    e('s_barrier')
    e.add(red_read(3, RT))
    e.add(red_sum(3, RT))
    e.add(final(3))
    e(f'''
    s_or_b32 s{sT0}, s2, s{sW}
    s_cmp_lg_u32 s{sT0}, 0
    s_cbranch_scc1 L_fin
    v_lshlrev_b32 v126, 7, v1
    v_add_u32 v126, {FLAG_P}, v126
    ''')
    for k in range(4):
        poll_issue(e, 126, 127)
        poll_check(e, 126, 127, f'ep{k}')
        e('v_add_u32 v126, 8192, v126')
    e(f's_mov_b32 s{sT0}, {EPOCH}')
    set_flag(e, sT0, None, False)
    e('L_fin:')
    if opt.stamps:
        stamp(e, 'end')
        e('s_waitcnt lgkmcnt(0)')
        k = len(stamps) - 1
        e.add([raw(f'v_writelane_b32 v2, s{SP[k & 1]}, {k}')])
        e(f'''
        s_lshl_b32 s{sT0}, s2, 2
        s_add_u32 s{sT0}, s{sT0}, s{sW}
        s_lshl_b32 s{sT0}, s{sT0}, 6
        s_add_u32 s{sT0}, s{sT0}, {STAMP}
        v_lshl_add_u32 v10, v1, 2, s{sT0}
        s_mov_b64 exec, 0xffff
        buffer_store_dword v2, v10, {srd(SRD_WS)}, 0 offen
        ''')
        if opt.spin:
            a, b, m, wg = opt.spin
            e(f'''
            s_cmp_lg_u32 s2, {wg}
            s_cbranch_scc1 L_end
            s_cmp_lg_u32 s{sW}, 0
            s_cbranch_scc1 L_end
            s_nop 4
            v_readlane_b32 s{sT0}, v2, {stamps.index(a)}
            v_readlane_b32 s{sT1}, v2, {stamps.index(b)}
            v_readlane_b32 s{sT2}, v2, {k}
            s_nop 4
            s_sub_u32 s{sT0}, s{sT1}, s{sT0}
            s_mul_i32 s{sT0}, s{sT0}, {m}
            s_min_u32 s{sT0}, s{sT0}, 100000
            s_add_u32 s{sT0}, s{sT0}, s{sT2}
L_dspin:
            s_memrealtime s[26:27]
            s_waitcnt lgkmcnt(0)
            s_sub_u32 s{sT1}, s26, s{sT0}
            s_cmp_lt_i32 s{sT1}, 0
            s_cbranch_scc1 L_dspin
            ''')
    e('L_end:')
    e('s_endpgm')

    S = Stream()
    e = S
    e('L_srole:')
    e(f'''
    s_sub_u32 s{sA}, s{sJ}, 28
    s_and_b32 s{sT0}, s{sXCD}, 3
    s_lshl_b32 s{sT1}, s{sT0}, 9
    s_lshr_b32 s{sT2}, s{sXCD}, 2
    s_lshl_b32 s{sT3}, s{sT2}, 8
    s_add_u32 s{sT1}, s{sT1}, s{sT3}
    s_lshl_b32 s{sT3}, s{sA}, 6
    s_add_u32 s{sT1}, s{sT1}, s{sT3}
    s_lshl_b32 s{sT3}, s{sW}, 4
    s_add_u32 s{sB}, s{sT1}, s{sT3}
    s_lshl_b32 s{sSOX}, s{sB}, 10
    v_lshlrev_b32 v122, 4, v1
    s_lshl_b32 s{sT0}, s{sT0}, 2
    s_add_u32 s{sROT}, s{sT0}, s{sA}
    ''')
    for r in range(16):
        if r and r % 4 == 0:
            e(f's_add_u32 s{sSOX}, s{sSOX}, 4096')
        e(f'buffer_load_dwordx4 v[{128 + 4 * r}:{131 + 4 * r}], v122, {srd(SRD_X)}, s{sSOX} offen offset:{1024 * (r % 4)} {opt.ld_in}')
    e(f'''
    s_and_b32 s{sT0}, s{sROT}, 1
    s_cmp_eq_u32 s{sT0}, 0
    s_cselect_b32 s{SRD_W}, s22, s24
    s_cselect_b32 s{SRD_W + 1}, s23, s25
    s_mul_i32 s{sT2}, s{sT2}, 7
    s_lshr_b32 s{sT1}, s{sROT}, 1
    s_add_u32 s{sT2}, s{sT2}, s{sT1}
    s_mul_i32 s{sM0W}, s{sT0}, 1792
    s_lshl_b32 s{sT1}, s{sT2}, 7
    s_add_u32 s{sM0W}, s{sM0W}, s{sT1}
    s_lshl_b32 s{sM0W}, s{sM0W}, 3
    s_add_u32 s{sM0W}, s{sM0W}, {CS}
    s_lshl_b32 s{sT2}, s{sT2}, 8
    s_mul_i32 s{sT1}, s{sW}, {128 * 3584}
    s_add_u32 s{sT2}, s{sT2}, s{sT1}
    s_cmp_ge_u32 s{sROT}, 14
    s_cselect_b32 s{sT2}, 0x80000000, s{sT2}
    s_cselect_b32 s{sM0W}, 0x80000000, s{sM0W}
    v_mul_u32_u24 v84, 3584, v3
    v_lshl_add_u32 v84, v4, 4, v84
    v_add_u32 v84, s{sT2}, v84
    s_mov_b32 s{sSOW}, 0
    ''')
    CW = 192

    def cs_load(n):
        s = Stream()
        r = CW + 4 * (n % 15)
        s(f'buffer_load_dwordx4 v[{r}:{r + 3}], v84, {srd(SRD_W)}, s{sSOW} offen {opt.ld_in}')
        s(f's_add_u32 s{sSOW}, s{sSOW}, 14336')
        return s.l
    for n in range(15):
        e.add(cs_load(n))
    code_prefetch(e, 'L_pcs')
    late_srds(e)
    stamp(e, None, 1)
    p_compute(e)
    stamp(e, None, 2)
    e('v_mov_b32 v85, 0x3f803f80\nv_mov_b32 v86, 0x3f80\nv_mov_b32 v87, 0x3f800000')
    for r in range(16):
        b = 128 + 4 * r
        e(f'v_dot2_f32_bf16 v{20 + r}, v{b}, v85, 0')
        e(f'v_dot2_f32_bf16 v{36 + r}, v{b}, v{b}, 0')
        for k in range(1, 4):
            e(f'v_dot2_f32_bf16 v{20 + r}, v{b + k}, v85, v{20 + r}')
            e(f'v_dot2_f32_bf16 v{36 + r}, v{b + k}, v{b + k}, v{36 + r}')
    for n in range(32):
        r = CW + 4 * (n % 15)
        for k in range(4):
            c0 = '0' if n == 0 else f'v{52 + 2 * k}'
            c1 = '0' if n == 0 else f'v{53 + 2 * k}'
            e(f'v_dot2_f32_bf16 v{52 + 2 * k}, v{r + k}, v86, {c0}')
            e(f'v_dot2_f32_bf16 v{53 + 2 * k}, v{r + k}, v87, {c1}')
        if n + 15 < 32:
            e.add(cs_load(n + 15))
    e(f'''
    s_lshl_b32 s{sT0}, s{sW}, 11
    v_lshlrev_b32 v60, 9, v3
    v_lshl_add_u32 v60, v4, 5, v60
    v_add_u32 v60, s{sT0}, v60
    ''')
    e(f'ds_write_b128 v60, v[52:55] offset:{SCS}', tag='scs')
    e(f'ds_write_b128 v60, v[56:59] offset:{SCS + 16}', tag='scs')
    for base in (20, 36):
        for r in range(8):
            e(f'v_permlane32_swap_b32 v{base + r}, v{base + r + 8}')
        for r in range(8):
            e(f'v_add_f32 v{base + r}, v{base + r}, v{base + r + 8}')
        for r in range(4):
            e(f'v_permlane16_swap_b32 v{base + r}, v{base + r + 4}')
        for r in range(4):
            e(f'v_add_f32 v{base + r}, v{base + r}, v{base + r + 4}')
    for sh in (8, 4, 2, 1):
        for base in (20, 36):
            for r in range(4):
                e(f'v_add_f32_dpp v{base + r}, v{base + r}, v{base + r} row_ror:{sh} row_mask:0xf bank_mask:0xf')
    for base in (20, 36):
        for r in range(1, 4):
            e(f'v_cmp_eq_u32 vcc, {r}, v4')
            e(f'v_cndmask_b32 v{base}, v{base}, v{base + r}, vcc')
    e(f'''
    v_mul_f32 v20, 0x3b000000, v20
    v_mul_f32 v36, 0x3b000000, v36
    v_fma_f32 v21, -v20, v20, v36
    v_max_f32 v21, 0, v21
    v_add_f32 v21, 0x3727c5ac, v21
    v_and_b32 v22, 1, v3
    v_lshl_add_u32 v22, v22, 2, v4
    v_lshrrev_b32 v23, 1, v3
    v_lshl_add_u32 v22, v23, 3, v22
    v_add_u32 v22, s{sB}, v22
    v_lshlrev_b32 v22, 3, v22
    v_add_u32 v22, {STATS}, v22
    v_mov_b32 v23, 0x80000000
    v_cmp_gt_u32 vcc, 4, v4
    v_cndmask_b32 v22, v23, v22, vcc
    ''')
    e(f'buffer_store_dwordx2 v[20:21], v22, {srd(SRD_WS)}, 0 offen sc1', tag='sst')
    e.wait('scs')
    e('s_barrier')
    e('v_and_b32 v61, 127, v0\nv_lshlrev_b32 v62, 2, v61')
    for k in range(16):
        e(f'ds_read_b32 v{24 + k}, v62 offset:{SCS + 512 * k}')
    for stp in (8, 4, 2, 1):
        for k in range(stp):
            e(f'v_add_f32 v{24 + k}, v{24 + k}, v{24 + k + stp}')
    e(f'''
    v_cvt_pk_bf16_f32 v26, v24, v24
    v_lshlrev_b32 v25, 16, v26
    v_sub_f32 v25, v24, v25
    v_cvt_pk_bf16_f32 v27, v25, v25
    v_lshlrev_b32 v61, 3, v61
    v_add_u32 v61, s{sM0W}, v61
    ''')
    e(f'buffer_store_dwordx2 v[26:27], v61, {srd(SRD_WS)}, 0 offen sc1', tag='sst')
    e.wait('VM0')
    e('s_barrier')
    e(f'''
    s_lshl_b32 s{sT0}, s{sXCD}, 2
    s_add_u32 s{sT0}, s{sT0}, s{sA}
    s_lshl_b32 s{sT0}, s{sT0}, 7
    s_add_u32 s{sT0}, s{sT0}, {FLAG_S}
    ''')
    e.add(flag_block(sT0, 'L_sf1'))
    e(f's_lshl_b32 s{sT0}, s{sXCD}, 12\ns_lshl_b32 s{sT1}, s{sJ}, 7\ns_add_u32 s{sT0}, s{sT0}, s{sT1}\ns_add_u32 s{sT0}, s{sT0}, {FLAG_P}')
    e.add(flag_block(sT0, 'L_sf2'))
    wd_addr_setup(e)
    for i in range(7):
        for grp in wd_dma(i):
            e.add(grp)
    p_poll_setup(e)
    cv_loads(e)
    u_loads(e, 'pfs')
    e(f's_mov_b32 s{sHB}, {FLAG_H + 0x1ff80}')
    for k in range(3, stamps.index('G1epi') + 1 if opt.stamps else 0):
        e('s_waitcnt lgkmcnt(0)')
        stamp(e, None, k)
    e.wait('ALL')
    e('s_nop 4')
    e('s_branch L_tail')

    def fin(lst):
        r = resolve_waits(lst)
        for it in r:
            if it.kind == 'vmem_untracked':
                it.kind = 'vmem'
        r, n = insert_nops(r)
        return r, n
    A, n1 = fin(P0.l + G1.l + T.l)
    mark = I('L_mark:')
    Bs, n2 = fin(P0.l + [mark] + S.l)
    Bs = Bs[Bs.index(mark) + 1:]
    body = render(A) + render(Bs) + 'L_codeend:\n'
    hdr = open(os.path.join(os.path.dirname(os.path.abspath(__file__)), 'header.txt')).read()
    txt = hdr + f'''; @launch grid=(256,1,1) block=(256,1,1) lds=163840
.amdgcn_target "amdgcn-amd-amdhsa--gfx950"
.text
.globl {NAME}_kernel
.p2align 8
.type {NAME}_kernel,@function
{NAME}_kernel:
''' + body + f'''.section .rodata,"a"
.p2align 6
.amdhsa_kernel {NAME}_kernel
  .amdhsa_next_free_vgpr 512
  .amdhsa_next_free_sgpr 102
  .amdhsa_accum_offset 256
  .amdhsa_group_segment_fixed_size 0
  .amdhsa_kernarg_size 104
  .amdhsa_user_sgpr_count 2
  .amdhsa_user_sgpr_kernarg_segment_ptr 1
  .amdhsa_system_sgpr_workgroup_id_x 1
.end_amdhsa_kernel
'''
    return txt, stamps, (len(A), len(Bs), n1, n2)


if __name__ == '__main__':
    opt = Opt()
    out = sys.argv[1] if len(sys.argv) > 1 else f'cdna_kernels/{NAME}.s'
    for a in sys.argv[2:]:
        k, v = a.split('=')
        setattr(opt, k, eval(v))
    txt, stamps, info = gen(opt)
    open(out, 'w').write(txt)
    print('wrote', out, 'instrs/nops', info, 'stamps', stamps)
```

```python
import sys, os
sys.path.insert(0, os.path.dirname(os.path.abspath(__file__)))
from asmlib import *

NAME = 'recurrent_scan__ssm_conv_h3__swiglu_ffn__prompt'

WSBASE = 0x8000000
WSSIZE = 0x1000000
EPOCH = 0x0
FLAG_S = 0x1000
FLAG_P = 0x4000
FLAG_Y = 0x10000
FLAG_H = 0x20000
STATS = 0x40000
CS = 0x48000
STAMP = 0x80000
UT = 0x100000
YT = 0x300000
HH = 0x600000

SLOT = [0, 49152, 98304]
PK = 98304
PV = PK + 9216
PO = PV + 8192
WD_A = 98304
WD_B = 0
CV = 49152
CVCH = 21760
CVR = 16640
RED = 49152
YS = 49152 + 32768
SCS = 0

sW, sXCD, sJ, sTAG, sT0 = 3, 4, 5, 6, 7
SRD_X, SRD_K, SRD_V, SRD_W, SRD_SSM, SRD_DN, SRD_OUT, SRD_WS = 36, 40, 44, 48, 52, 56, 60, 64
sA, sB, sROT = 68, 69, 70
sRB2, sDB, sC0 = 71, 72, 73
sT1, sT2, sT3, sT4 = 74, 75, 76, 77
sSPIN = 78
sM0W, sM0X, sMASK = 79, 80, 81
sSOW, sSOX = 82, 83
sHB = 84
sSTEP = 86
sWDA, sWDB = 8, 9
sHL = 11
sSO2 = 12
sST = 20


def srd(r):
    return f's[{r}:{r + 3}]'


class Opt:
    stamps = False
    spin = None
    tiny = None
    clk = 's_memrealtime'
    stop = None
    ld_in = ''
    out_st = ''
    D = 5
    G = 3
    NB = 10


def gen(opt):
    stamps = []
    SP = [26, 28]

    def raw(text):
        it = I(text)
        it.src = set()
        it.dst = set()
        return it

    def stamp(st, name, idx=None):
        if not opt.stamps:
            return
        if idx is None:
            idx = len(stamps)
            stamps.append(name)
        if idx == 0:
            st.add([raw(f'{opt.clk} s[100:101]')])
            return
        prev = 100 if idx == 1 else SP[(idx - 1) & 1]
        st.add([raw(f'v_writelane_b32 v2, s{prev}, {idx - 1}'), raw(f'{opt.clk} s[{SP[idx & 1]}:{SP[idx & 1] + 1}]')])

    P0 = Stream()
    e = P0
    e(f'''
    s_cmp_ge_u32 s2, 256
    s_cbranch_scc1 L_end
    ''')
    stamp(e, 'start')
    e(f'''
    s_load_dwordx16 s[8:23], s[0:1], 0
    s_load_dwordx8 s[24:31], s[0:1], 64
    s_load_dwordx2 s[32:33], s[0:1], 96
    v_lshrrev_b32 v2, 6, v0
    v_and_b32 v1, 63, v0
    s_and_b32 s{sXCD}, s2, 7
    v_readfirstlane_b32 s{sW}, v2
    s_lshr_b32 s{sJ}, s2, 3
    v_lshrrev_b32 v3, 4, v1
    v_and_b32 v4, 15, v1
    v_lshrrev_b32 v5, 3, v1
    v_and_b32 v6, 7, v1
    v_lshrrev_b32 v7, 2, v4
    v_and_b32 v8, 3, v1
    s_mov_b32 s{sMASK}, 0xffff
    ''')
    e(f'''
    v_lshrrev_b32 v9, 1, v6
    v_and_b32 v10, 1, v3
    v_xor_b32 v9, v9, v10
    v_lshlrev_b32 v9, 5, v9
    v_and_b32 v10, 1, v6
    v_lshl_add_u32 v9, v10, 4, v9
    v_lshl_add_u32 v9, v5, 10, v9
    s_lshl_b32 s{sT0}, s{sXCD}, 7
    v_add_u32 v9, s{sT0}, v9
    s_and_b32 s{sT1}, s{sW}, 1
    s_lshl_b32 s{sT1}, s{sT1}, 6
    v_xor_b32 v10, s{sT1}, v9
    v_xor_b32 v11, 64, v10
    s_lshl_b32 s{sT2}, s{sJ}, 16
    s_lshl_b32 s{sT3}, s{sW}, 14
    s_add_u32 s{sT3}, s{sT3}, s{sT2}
    s_sub_u32 s{sT4}, s{sT2}, 8192
    s_cmp_eq_u32 s{sJ}, 0
    s_cselect_b32 s{sT4}, 0x80000000, s{sT4}
    v_add_u32 v12, s{sT4}, v9
    s_lshl_b32 s{sT0}, s{sW}, 11
    ''')
    e('s_waitcnt lgkmcnt(0)')

    def mk_srd(r, p, size):
        e(f's_mov_b32 s{r}, s{p}\ns_mov_b32 s{r + 1}, s{p + 1}\ns_mov_b32 s{r + 2}, {size}\ns_mov_b32 s{r + 3}, 0x20000')
    mk_srd(SRD_K, 10, 0x200000)
    mk_srd(SRD_V, 12, 0x200000)
    e(f'''
    s_cmp_lg_u32 s{sW}, 0
    s_cbranch_scc1 L_nohalo
    s_mov_b32 m0, {PK}
    s_nop 0
    buffer_load_dwordx4 v12, {srd(SRD_K)}, 0 offen {opt.ld_in} lds
L_nohalo:
    ''')
    e(f's_add_u32 m0, s{sT0}, {PK + 1024}')
    e(f's_add_u32 s{sT2}, s{sT3}, 8192')
    e(f'buffer_load_dwordx4 v10, {srd(SRD_K)}, s{sT3} offen {opt.ld_in} lds', tag='pk')
    e(f's_add_u32 m0, s{sT0}, {PK + 2048}')
    mk_srd(SRD_X, 8, 0x200000)
    e(f'buffer_load_dwordx4 v11, {srd(SRD_K)}, s{sT2} offen {opt.ld_in} lds', tag='pk')
    e(f's_add_u32 m0, s{sT0}, {PV}')
    e(f's_add_u32 s{SRD_WS}, s32, {WSBASE}\ns_addc_u32 s{SRD_WS + 1}, s33, 0\ns_mov_b32 s{SRD_WS + 2}, {WSSIZE}\ns_mov_b32 s{SRD_WS + 3}, 0x20000')
    e(f'buffer_load_dwordx4 v10, {srd(SRD_V)}, s{sT3} offen {opt.ld_in} lds', tag='pk')
    e(f's_add_u32 m0, s{sT0}, {PV + 1024}')
    e(f'''
    s_lshl_b32 s{sT1}, s{sXCD}, 9
    s_lshl_b32 s{sT4}, s{sW}, 7
    s_add_u32 s{sT1}, s{sT1}, s{sT4}
    v_lshl_add_u32 v13, v4, 3, s{sT1}
    ''')
    e(f'buffer_load_dwordx4 v10, {srd(SRD_V)}, s{sT2} offen {opt.ld_in} lds', tag='pk')
    e('global_load_dwordx2 v[14:15], v13, s[14:15]')
    e('v_mov_b32 v16, 0')
    e(f'buffer_load_dword v17, v16, {srd(SRD_WS)}, 0 offen sc1')
    e(f'''
    s_and_b32 s{sT0}, s{sW}, 1
    s_cmp_eq_u32 s{sT0}, 0
    s_cselect_b32 s{SRD_W}, s22, s24
    s_cselect_b32 s{SRD_W + 1}, s23, s25
    s_mov_b32 s{SRD_W + 2}, {512 * 3584}
    s_mov_b32 s{SRD_W + 3}, 0x20000
    s_and_b32 s{sT0}, s{sXCD}, 3
    s_lshr_b32 s{sT1}, s{sXCD}, 2
    s_and_b32 s{sT2}, s{sJ}, 3
    s_lshr_b32 s{sT3}, s{sJ}, 2
    s_lshl_b32 s{sB}, s{sT0}, 2
    s_add_u32 s{sB}, s{sB}, s{sT2}
    s_mul_i32 s{sA}, s{sT1}, 7
    s_add_u32 s{sA}, s{sA}, s{sT3}
    s_lshl_b32 s{sROT}, s{sT2}, 1
    s_add_u32 s{sROT}, s{sROT}, s{sT3}
    s_and_b32 s{sROT}, s{sROT}, 7
    s_lshl_b32 s{sRB2}, s{sXCD}, 2
    s_add_u32 s{sRB2}, s{sRB2}, s{sT2}
    s_mov_b32 s{sDB}, s{sT3}
    s_lshl_b32 s{sC0}, s{sXCD}, 6
    s_lshl_b32 s{sT4}, s{sJ}, 1
    s_add_u32 s{sC0}, s{sC0}, s{sT4}
    s_cmp_ge_u32 s{sJ}, 28
    s_cbranch_scc1 L_srole
    ''')

    def late_srds(e):
        e(f's_mov_b32 s{SRD_SSM}, s16\ns_mov_b32 s{SRD_SSM + 1}, s17\ns_mov_b32 s{SRD_SSM + 2}, 0x200000\ns_mov_b32 s{SRD_SSM + 3}, 0x20000')
        e(f's_mov_b32 s{SRD_DN}, s26\ns_mov_b32 s{SRD_DN + 1}, s27\ns_mov_b32 s{SRD_DN + 2}, {1792 * 1024}\ns_mov_b32 s{SRD_DN + 3}, 0x20000')
        e(f's_mov_b32 s{SRD_OUT}, s28\ns_mov_b32 s{SRD_OUT + 1}, s29\ns_mov_b32 s{SRD_OUT + 2}, 0x200000\ns_mov_b32 s{SRD_OUT + 3}, 0x20000')
        e(f'''
        s_mul_i32 s{sWDB}, s{sW}, 12288
        s_lshl_b32 s{sWDA}, s{sW}, 14
        s_add_u32 s{sWDA}, s{sWDA}, {WD_A}
        s_lshr_b32 s{sT0}, s{sDB}, 2
        s_mul_i32 s{sT0}, s{sT0}, 7
        s_and_b32 s{sT1}, s{sJ}, 3
        s_lshl_b32 s{sT1}, s{sT1}, 1
        s_add_u32 s{sT0}, s{sT0}, s{sT1}
        s_lshl_b32 s{sT0}, s{sT0}, 11
        ''')
        for i in range(14):
            e(f's_mov_b32 s{sSTEP + i}, s{sT0}')
            if i < 13:
                e(f's_add_u32 s{sT0}, s{sT0}, 2048\ns_cmp_eq_u32 s{sT0}, {14 * 2048}\ns_cselect_b32 s{sT0}, 0, s{sT0}')

    def code_prefetch(e, lab):
        e(f'''
        s_getpc_b64 s[34:35]
{lab}:
        s_sub_u32 s34, s34, {lab}-{NAME}_kernel
        s_subb_u32 s35, s35, 0
        v_lshlrev_b32 v18, 7, v0
        v_min_u32 v18, L_codeend-{NAME}_kernel-4, v18
        global_load_dword v19, v18, s[34:35]
        ''')

    def p_compute(e):
        e(f'''
        v_lshlrev_b32 v62, 4, v3
        v_add_u32 v62, v62, v7
        v_lshlrev_b32 v62, 7, v62
        v_lshl_add_u32 v62, v8, 3, v62
        v_lshrrev_b32 v63, 1, v7
        v_and_b32 v64, 1, v3
        v_lshl_add_u32 v63, v64, 1, v63
        v_xor_b32 v63, s{sW}, v63
        v_lshl_add_u32 v62, v63, 5, v62
        v_xor_b32 v63, 64, v62
        v_add_u32 v62, {PK}, v62
        v_add_u32 v63, {PK}, v63
        ''')
        e.wait('pk')
        e('s_barrier')
        for n in range(-1, 4):
            reg = 62 if n <= 1 else 63
            e(f'ds_read_b64_tr_b16 v[{20 + 2 * (n + 1)}:{21 + 2 * (n + 1)}], v{reg} offset:{(8 + 4 * n) * 128}')
        for n in range(4):
            e(f'ds_read_b64_tr_b16 v[{30 + 2 * n}:{31 + 2 * n}], v62 offset:{(PV - PK) + 4 * n * 128}')
        e(f'''
        v_alignbit_b32 v40, v14, v14, 16
        v_alignbit_b32 v41, v15, v15, 16
        v_and_b32 v42, 0xffff, v14
        v_bfi_b32 v43, s{sMASK}, v15, v14
        v_and_b32 v44, 0xffff0000, v15
        v_readfirstlane_b32 s{sTAG}, v17
        ''')
        e(f's_add_u32 s{sTAG}, s{sTAG}, 1')
        K = lambda n: f'v{22 + n}'
        for n in range(8):
            e(f'v_dot2_f32_bf16 v{47 + 2 * n}, {K(n)}, v40, 0')
            e(f'v_dot2_f32_bf16 v{46 + 2 * n}, {K(n)}, v42, 0')
        for n in range(8):
            e(f'v_dot2_f32_bf16 v{47 + 2 * n}, {K(n - 1)}, v41, v{47 + 2 * n}')
            e(f'v_dot2_f32_bf16 v{46 + 2 * n}, {K(n - 1)}, v43, v{46 + 2 * n}')
        for n in range(8):
            e(f'v_dot2_f32_bf16 v{46 + 2 * n}, {K(n - 2)}, v44, v{46 + 2 * n}')
        e(f'''
        s_mul_i32 s{sT0}, s{sW}, 2304
        s_add_u32 s{sT0}, s{sT0}, {PO + 96}
        v_mul_u32_u24 v64, 144, v4
        v_lshlrev_b32 v65, 5, v3
        v_sub_u32 v64, v64, v65
        v_add_u32 v64, s{sT0}, v64
        v_mul_u32_u24 v65, 144, v5
        v_lshl_add_u32 v65, v6, 4, v65
        s_sub_u32 s{sT0}, s{sT0}, 96
        v_add_u32 v65, s{sT0}, v65
        ''')
        for n in range(8):
            e(f'v_lshlrev_b32 v{66 + 2 * n}, 16, v{30 + n}')
            e(f'v_and_b32 v{67 + 2 * n}, 0xffff0000, v{30 + n}')
        for n in range(8):
            e(f'v_pk_mul_f32 v[{46 + 2 * n}:{47 + 2 * n}], v[{46 + 2 * n}:{47 + 2 * n}], v[{66 + 2 * n}:{67 + 2 * n}]')
        for m in range(8):
            n = 7 - m
            e(f'v_cvt_pk_bf16_f32 v{20 + m}, v{47 + 2 * n}, v{46 + 2 * n}')
        e('ds_write_b128 v64, v[20:23]', tag='po')
        e('ds_write_b128 v64, v[24:27] offset:16', tag='po')
        e(f'''
        s_lshl_b32 s{sT0}, s{sXCD}, 6
        s_lshl_b32 s{sT1}, s{sW}, 4
        s_add_u32 s{sT0}, s{sT0}, s{sT1}
        s_lshl_b32 s{sT0}, s{sT0}, 12
        s_lshl_b32 s{sT1}, s{sJ}, 7
        s_sub_u32 s{sT0}, s{sT0}, s{sT1}
        s_add_u32 s{sT0}, s{sT0}, {UT + 3968}
        s_add_u32 s{sT1}, s{sT0}, 32768
        v_lshlrev_b32 v66, 12, v5
        v_lshl_add_u32 v66, v6, 4, v66
        ''')
        e.wait('po')
        e('ds_read_b128 v[28:31], v65')
        e(f'ds_read_b128 v[32:35], v65 offset:{8 * 144}')
        e(f'buffer_store_dwordx4 v[28:31], v66, {srd(SRD_WS)}, s{sT0} offen sc1', tag='ust')
        e(f'buffer_store_dwordx4 v[32:35], v66, {srd(SRD_WS)}, s{sT1} offen sc1', tag='ust')

    def set_flag(e, addr_sreg, label, wave0=True):
        if wave0:
            e(f's_cmp_lg_u32 s{sW}, 0\ns_cbranch_scc1 {label}')
        e(f'''
        v_mov_b32 v10, s{addr_sreg}
        v_mov_b32 v11, s{sTAG}
        s_mov_b64 exec, 1
        buffer_store_dword v11, v10, {srd(SRD_WS)}, 0 offen sc1
        s_mov_b64 exec, -1
        ''')
        if wave0:
            e(f'{label}:')

    def untracked(stream_items):
        for it in stream_items:
            if it.kind == 'vmem':
                it.kind = 'vmem_untracked'
        return stream_items

    def flag_block(addr_sreg, label):
        s = Stream()
        set_flag(s, addr_sreg, label, True)
        return untracked(s.l)

    def poll_issue(e, vaddr, vdst):
        e(f'buffer_load_dword v{vdst}, v{vaddr}, {srd(SRD_WS)}, 0 offen sc1')

    def poll_check(e, vaddr, vdst, name):
        e(f'''
        v_cmp_ne_u32 vcc, s{sTAG}, v{vdst}
        s_cbranch_vccz L_{name}_ok
        s_mov_b32 s{sSPIN}, 0
L_{name}_spin:
        s_sleep 1
        ''')
        s = Stream()
        s(f'buffer_load_dword v{vdst}, v{vaddr}, {srd(SRD_WS)}, 0 offen sc1')
        e.add(untracked(s.l))
        s = Stream()
        s('s_waitcnt vmcnt(0)')
        s.l[0].op = 's_waitcnt_untracked'
        e.add(s.l)
        e(f'''
        v_cmp_ne_u32 vcc, s{sTAG}, v{vdst}
        s_add_u32 s{sSPIN}, s{sSPIN}, 1
        s_cmp_ge_u32 s{sSPIN}, 0x40000
        s_cbranch_scc1 L_{name}_ok
        s_cbranch_vccnz L_{name}_spin
L_{name}_ok:
        ''')

    VWD = 72
    VWR = 76

    def wd_addr_setup(e):
        e(f'''
        v_lshrrev_b32 v92, 1, v6
        v_lshrrev_b32 v93, 1, v5
        v_and_b32 v93, 3, v93
        v_xor_b32 v92, v92, v93
        v_lshlrev_b32 v92, 5, v92
        v_and_b32 v93, 1, v6
        v_lshl_add_u32 v92, v93, 4, v92
        v_lshl_add_u32 v92, v5, 10, v92
        s_mul_i32 s{sT0}, s{sW}, {448 * 1024}
        s_lshl_b32 s{sT1}, s{sDB}, 7
        s_add_u32 s{sT0}, s{sT0}, s{sT1}
        v_add_u32 v{VWD}, s{sT0}, v92
        v_add_u32 v{VWD + 1}, {7168}, v{VWD}
        v_add_u32 v{VWD + 2}, {2 * 7168}, v{VWD}
        v_add_u32 v{VWD + 3}, {3 * 7168}, v{VWD}
        v_lshrrev_b32 v92, 1, v3
        v_lshlrev_b32 v92, 4, v92
        v_and_b32 v93, 1, v3
        v_lshl_add_u32 v92, v93, 2, v92
        v_add_u32 v92, v92, v7
        v_lshlrev_b32 v92, 7, v92
        v_lshl_add_u32 v92, v8, 3, v92
        v_lshrrev_b32 v94, 1, v7
        v_lshl_add_u32 v93, v93, 1, v94
        v_lshl_add_u32 v92, v93, 5, v92
        ''')
        for dt in range(4):
            e(f'v_xor_b32 v93, {dt << 5}, v92')
            e(f'v_add_u32 v{VWR + dt}, s{sWDA}, v93')
            e(f'v_add_u32 v{VWR + 4 + dt}, s{sWDB}, v93')

    def wd_buf(i):
        i = i % 7
        if i <= 3:
            return sWDA, VWR, i * 4096
        return sWDB, VWR + 4, (i - 4) * 4096

    def wd_dma(i):
        sm, _, off = wd_buf(i)
        out = []
        for n in range(4):
            s = Stream()
            if n == 0:
                s(f's_add_u32 m0, s{sm}, {off}')
                s(f's_lshl_b32 s{sSO2}, s{sSTEP + i}, 4')
            s(f'buffer_load_dwordx4 v{VWD + n}, {srd(SRD_DN)}, s{sSO2} offen offset:{1024 * n} lds', tag=f'wd{i}')
            out.append(s.l)
        return out

    def wd_reads(i):
        _, vr, off = wd_buf(i)
        out = []
        for dt in range(4):
            for h in range(2):
                a = 16 * i + 4 * dt + 2 * h
                out.append(I(f'ds_read_b64_tr_b16 a[{a}:{a + 1}], v{vr + dt} offset:{off + 1024 * h}', tag=f'wr{i}'))
        return out

    def cv_loads(e):
        e(f'''
        s_lshr_b32 s{sT0}, s{sW}, 1
        s_add_u32 s{sT0}, s{sT0}, s{sC0}
        s_lshl_b32 s{sT1}, s{sT0}, 12
        s_and_b32 s{sT2}, s{sW}, 1
        s_lshl_b32 s{sT2}, s{sT2}, 11
        s_add_u32 s{sT2}, s{sT2}, s{sT1}
        v_lshlrev_b32 v122, 4, v1
        v_add_u32 v123, v4, v3
        v_subrev_u32 v123, 16, v123
        v_lshlrev_b32 v124, 1, v123
        v_add_u32 v124, s{sT1}, v124
        v_cmp_gt_i32 vcc, 0, v123
        v_mov_b32 v125, 0x80000000
        v_cndmask_b32 v124, v124, v125, vcc
        s_lshl_b32 s{sT0}, s{sT0}, 1
        v_mov_b32 v125, s{sT0}
        ''')
        for c in range(2):
            e(f'buffer_load_dwordx4 v[{96 + 8 * c}:{99 + 8 * c}], v122, {srd(SRD_SSM)}, s{sT2} offen offset:{1024 * c} {opt.ld_in}')
            e(f'buffer_load_dwordx4 v[{100 + 8 * c}:{103 + 8 * c}], v122, {srd(SRD_SSM)}, s{sT2} offen offset:{1024 * c + 4} {opt.ld_in}')
            e(f'buffer_load_dword v{112 + c}, v122, {srd(SRD_SSM)}, s{sT2} offen offset:{1024 * c + 20} {opt.ld_in}')
        e(f'buffer_load_ushort v120, v124, {srd(SRD_SSM)}, 0 offen')
        e(f'global_load_ushort v121, v125, s[18:19]')

    def p_poll_setup(e):
        e(f'''
        s_lshl_b32 s{sT0}, s{sXCD}, 12
        s_add_u32 s{sT0}, s{sT0}, {FLAG_P}
        v_and_b32 v126, 31, v1
        v_lshl_add_u32 v126, v126, 7, s{sT0}
        ''')
        poll_issue(e, 126, 127)

    def u_loads(e, name):
        poll_check(e, 126, 127, name)
        e(f'''
        s_lshr_b32 s{sT0}, s{sW}, 1
        s_add_u32 s{sT1}, s{sT0}, s{sC0}
        s_lshl_b32 s{sT1}, s{sT1}, 12
        s_and_b32 s{sT2}, s{sW}, 1
        s_lshl_b32 s{sT3}, s{sT2}, 11
        s_add_u32 s{sT1}, s{sT1}, s{sT3}
        s_add_u32 s{sT4}, s{sT1}, {UT}
        s_add_u32 s{sSOW}, s{sT1}, {YT}
        ''')
        e(f'buffer_load_dwordx4 v[84:87], v122, {srd(SRD_WS)}, s{sT4} offen sc1')
        e(f'buffer_load_dwordx4 v[88:91], v122, {srd(SRD_WS)}, s{sT4} offen offset:1024 sc1')

    G1 = Stream()
    e = G1
    VXD = 24 + 60
    VWDM = 88
    VRW = [96, 104]
    VRX = [112, 116]
    e(f'''
    v_lshrrev_b32 v92, 1, v4
    v_xor_b32 v92, v92, v3
    s_and_b32 s{sT0}, s{sW}, 1
    s_lshl_b32 s{sT1}, s{sT0}, 2
    v_xor_b32 v92, s{sT1}, v92
    v_lshlrev_b32 v92, 5, v92
    v_and_b32 v93, 1, v1
    v_lshl_add_u32 v92, v93, 4, v92
    v_mul_u32_u24 v93, 3584, v3
    v_add_u32 v92, v92, v93
    s_lshr_b32 s{sT1}, s{sW}, 1
    s_mul_i32 s{sT2}, s{sT1}, {32 * 3584}
    s_lshl_b32 s{sT3}, s{sA}, 8
    s_add_u32 s{sT2}, s{sT2}, s{sT3}
    v_add_u32 v{VWDM}, s{sT2}, v92
    v_add_u32 v{VWDM + 1}, {13312}, v{VWDM}
    v_add_u32 v{VWDM + 2}, {2 * 13312}, v{VWDM}
    v_add_u32 v{VWDM + 3}, {3 * 13312}, v{VWDM}
    s_lshl_b32 s{sM0W}, s{sT0}, 14
    s_lshl_b32 s{sT1}, s{sT1}, 13
    s_add_u32 s{sM0W}, s{sM0W}, s{sT1}
    s_lshl_b32 s{sM0X}, s{sW}, 12
    s_add_u32 s{sM0X}, s{sM0X}, 32768
    s_lshl_b32 s{sT0}, s{sB}, 17
    s_lshl_b32 s{sT1}, s{sW}, 15
    s_add_u32 s{sT0}, s{sT0}, s{sT1}
    v_xor_b32 v92, v6, v3
    v_lshlrev_b32 v92, 4, v92
    v_lshl_add_u32 v92, v5, 10, v92
    v_add_u32 v{VXD}, s{sT0}, v92
    v_xor_b32 v93, 64, v{VXD}
    v_add_u32 v{VXD + 1}, {7168}, v93
    v_add_u32 v{VXD + 2}, {2 * 7168}, v{VXD}
    v_add_u32 v{VXD + 3}, {3 * 7168}, v93
    ''')

    def g1_dma(i):
        slot = SLOT[i % 3]
        out = []
        for n in range(12):
            s = Stream()
            if n == 0:
                s(f's_add_u32 s{sT3}, s{sROT}, {i}\ns_and_b32 s{sT3}, s{sT3}, 7')
                s(f's_mul_i32 s{sSOW}, s{sT3}, {64 * 3584}\ns_lshl_b32 s{sSOX}, s{sT3}, 7')
                s(f's_add_u32 m0, s{sM0X}, {slot}' if slot else f's_mov_b32 m0, s{sM0X}')
            if n == 4:
                s(f's_add_u32 m0, s{sM0W}, {slot}' if slot else f's_mov_b32 m0, s{sM0W}')
            if n == 8:
                s(f's_add_u32 m0, s{sM0W}, {slot + 4096}')
                s(f's_add_u32 s{sSOW}, s{sSOW}, {4 * 14336}')
            if n < 4:
                s(f'buffer_load_dwordx4 v{VXD + n}, {srd(SRD_X)}, s{sSOX} offen offset:{1024 * n} {opt.ld_in} lds', tag=f'c{i}')
            else:
                s(f'buffer_load_dwordx4 v{VWDM + (n & 3)}, {srd(SRD_W)}, s{sSOW} offen offset:{1024 * (n & 3)} {opt.ld_in} lds', tag=f'c{i}')
            out.append(s.l)
        return out

    for i in range(2):
        for grp in g1_dma(i):
            e.add(grp)
    code_prefetch(e, 'L_pcg')
    late_srds(e)
    e(f'''
    v_and_b32 v92, 1, v3
    v_lshrrev_b32 v93, 1, v3
    v_lshl_add_u32 v93, v93, 3, v7
    v_lshlrev_b32 v93, 8, v93
    v_lshl_add_u32 v93, v92, 14, v93
    v_lshl_add_u32 v93, v8, 3, v93
    v_lshlrev_b32 v92, 2, v92
    v_xor_b32 v92, v92, v7
    v_lshl_add_u32 v{VRW[0]}, v92, 5, v93
    ''')
    for t in range(1, 8):
        e(f'v_xor_b32 v{VRW[0] + t}, {t << 5}, v{VRW[0]}')
    for t in range(8):
        e(f'v_add_u32 v{VRW[1] + t}, {SLOT[2]}, v{VRW[0] + t}')
    e(f'''
    v_and_b32 v92, 31, v1
    v_lshrrev_b32 v93, 1, v92
    v_and_b32 v93, 7, v93
    v_lshrrev_b32 v94, 5, v1
    v_xor_b32 v93, v93, v94
    v_lshlrev_b32 v93, 4, v93
    v_lshl_add_u32 v93, v92, 7, v93
    v_add_u32 v{VRX[0]}, s{sM0X}, v93
    ''')
    for ks in range(1, 4):
        e(f'v_xor_b32 v{VRX[0] + ks}, {ks << 5}, v{VRX[0]}')
    for ks in range(4):
        e(f'v_add_u32 v{VRX[1] + ks}, {SLOT[2]}, v{VRX[0] + ks}')
    stamp(e, 'issued')
    p_compute(e)
    stamp(e, 'Pdone')
    wd_addr_setup(e)

    ACC = 128
    NB = opt.NB
    AF = 256 - 4 * NB - 16
    BF = 256 - 16
    mains = []
    reads = {}
    for i in range(8):
        slot = SLOT[i % 3]
        st = 1 if i % 3 == 2 else 0
        imm = 0 if st else slot
        rl = []
        for ks in range(4):
            bq = BF + 4 * ((4 * i + ks) % 4)
            rl.append((I(f'ds_read_b128 a[{bq}:{bq + 3}], v{VRX[st] + ks} offset:{imm}', tag=f'r{i}'), 32 * i + 8 * ks, 'B'))
            for t in range(8):
                m = 32 * i + 8 * ks + t
                aq = AF + 4 * (m % NB)
                for h in range(2):
                    rl.append((I(f'ds_read_b64_tr_b16 a[{aq + 2 * h}:{aq + 2 * h + 1}], v{VRW[st] + t} offset:{imm + ks * 4096 + h * 1024}', tag=f'r{i}'), m, 'A'))
                c = '0' if (i == 0 and ks == 0) else f'v[{ACC + 16 * t}:{ACC + 16 * t + 15}]'
                mains.append(I(f'v_mfma_f32_32x32x16_bf16 v[{ACC + 16 * t}:{ACC + 16 * t + 15}], a[{aq}:{aq + 3}], a[{bq}:{bq + 3}], {c}'))
        reads[i] = rl
    gaps = {}
    D, G = opt.D, opt.G

    def put(g, items):
        gaps.setdefault(g, [])
        gaps[g].extend(items if isinstance(items, list) else [items])

    pre = Stream()
    pre.wait('c0', 'LGKM0')
    pre('s_barrier')
    stamp(pre, 'slot0')
    put(-1, pre.l)
    for i in range(8):
        lo = 32 * i - D
        hi = 32 * (i + 1) - D - G
        rl = reads[i]
        n = len(rl)
        for jx, (ins, m, kind) in enumerate(rl):
            g = max(-1, lo + (jx * (hi - lo + 1)) // n)
            lim = (m - NB) if kind == 'A' else (m - 32 + 7)
            g = max(g, lim)
            assert g < m, (i, jx, g, m)
            assert g <= 32 * (i + 1) - D - 1 or i == 7
            put(g, ins)
        if i < 7:
            b = Stream()
            b.wait(f'c{i + 1}', 'LGKM0')
            b('s_barrier')
            g = 32 * (i + 1) - D
            gaps.setdefault(g, [])
            gaps[g] = b.l + gaps[g]
    for i in range(6):
        lo = max(32 * i - D + 1, 0)
        spread(gaps, g1_dma(i + 2), lo, lo + 27)
    s = Stream()
    s(f's_lshl_b32 s{sT0}, s{sXCD}, 12\ns_lshl_b32 s{sT1}, s{sJ}, 7\ns_add_u32 s{sT0}, s{sT0}, s{sT1}\ns_add_u32 s{sT0}, s{sT0}, {FLAG_P}')
    put(64 - D + 1, s.l + flag_block(sT0, 'L_pf'))
    spread(gaps, wd_dma(0) + wd_dma(1) + wd_dma(2) + wd_dma(3), 32 * 6 - D + 1, 32 * 6 - D + 30)
    spread(gaps, wd_dma(4) + wd_dma(5) + wd_dma(6), 32 * 7 - D + 1, 32 * 7 - D + 28)
    s = Stream()
    s(f'''
    s_and_b32 s{sT0}, s{sXCD}, 3
    s_bfe_u32 s{sT1}, s{sJ}, 0x10001
    s_lshl_b32 s{sT1}, s{sT1}, 2
    s_add_u32 s{sT0}, s{sT0}, s{sT1}
    s_lshl_b32 s{sT0}, s{sT0}, 2
    s_and_b32 s{sT1}, s{sJ}, 1
    s_lshl_b32 s{sT1}, s{sT1}, 1
    s_add_u32 s{sT0}, s{sT0}, s{sT1}
    s_lshr_b32 s{sT1}, s{sJ}, 2
    s_lshl_b32 s{sT1}, s{sT1}, 1
    s_and_b32 s{sT2}, s{sXCD}, 4
    s_lshl_b32 s{sT2}, s{sT2}, 2
    s_add_u32 s{sT1}, s{sT1}, s{sT2}
    v_mov_b32 v20, s{sT0}
    v_mov_b32 v21, s{sT1}
    v_and_b32 v22, 1, v1
    v_and_b32 v23, 2, v1
    v_cmp_eq_u32 vcc, 0, v23
    v_cndmask_b32 v20, v21, v20, vcc
    v_add_u32 v20, v20, v22
    v_lshlrev_b32 v20, 7, v20
    v_add_u32 v20, {FLAG_S}, v20
    ''')
    spread(gaps, [[x] for x in s.l], 32 * 4, 32 * 4 + 24)
    s = Stream()
    poll_issue(s, 20, 21)
    put(32 * 5 + 8, s.l)
    s = Stream()
    s(f'''
    v_and_b32 v22, 31, v1
    s_lshl_b32 s{sT0}, s{sB}, 10
    s_lshl_b32 s{sT1}, s{sW}, 8
    s_add_u32 s{sT0}, s{sT0}, s{sT1}
    s_add_u32 s{sT0}, s{sT0}, {STATS}
    v_lshl_add_u32 v22, v22, 3, s{sT0}
    v_and_b32 v23, 1, v3
    v_mul_u32_u24 v23, {1792 * 8}, v23
    v_lshl_add_u32 v23, v4, 3, v23
    s_lshl_b32 s{sT0}, s{sA}, 10
    s_add_u32 s{sT0}, s{sT0}, {CS}
    v_add_u32 v23, s{sT0}, v23
    v_cmp_lt_u32 vcc, 31, v1
    v_mov_b32 v24, 0x80000000
    v_cndmask_b32 v23, v23, v24, vcc
    ''')
    for t in range(8):
        s(f'v_mov_b32 v{34 + 4 * t}, 0\nv_mov_b32 v{35 + 4 * t}, 0')
    spread(gaps, [[x] for x in s.l], 32 * 5 + 9, 32 * 6 - 1)
    s = Stream()
    poll_check(s, 20, 21, 'sf')
    s(f'buffer_load_dwordx2 v[26:27], v22, {srd(SRD_WS)}, 0 offen sc1')
    put(32 * 6 + 2, s.l)
    s = Stream()
    for t in range(8):
        s(f'buffer_load_dwordx2 v[{32 + 4 * t}:{33 + 4 * t}], v23, {srd(SRD_WS)}, 0 offen offset:{128 * t} sc1')
    spread(gaps, [[x] for x in s.l], 32 * 6 + 4, 32 * 6 + 26)
    s = Stream()
    s(f'''
    v_rsq_f32 v24, v27
    v_sub_f32 v28, 0, v26
    v_cvt_pk_bf16_f32 v29, v28, v28
    v_mul_f32 v24, 0xbfb8aa3b, v24
    v_lshlrev_b32 v29, 16, v29
    v_mov_b32 v22, v27
    v_sub_f32 v29, v28, v29
    v_mov_b32 v25, v24
    v_cvt_pk_bf16_f32 v28, v28, v29
    v_mov_b32 v23, v27
    v_mov_b32 v29, v28
    v_mov_b32 v30, v28
    v_mov_b32 v31, v28
    ''')
    spread(gaps, [[x] for x in s.l], 32 * 7 + 8, 32 * 7 + 24)
    s = Stream()
    p_poll_setup(s)
    put(32 * 7 + 2, s.l)
    e.add(weave(mains, gaps))
    for t in range(8):
        e(f'v_mfma_f32_32x32x16_bf16 v[{ACC + 16 * t}:{ACC + 16 * t + 15}], v[{32 + 4 * t}:{35 + 4 * t}], v[28:31], v[{ACC + 16 * t}:{ACC + 16 * t + 15}]')
    stamp(e, 'G1loop')
    cv_loads(e)
    u_loads(e, 'pf')
    e(f'''
    s_lshl_b32 s{sT0}, s{sB}, 2
    s_add_u32 s{sT0}, s{sT0}, s{sW}
    s_mul_i32 s{sT0}, s{sT0}, 112
    s_lshl_b32 s{sT1}, s{sA}, 3
    s_add_u32 s{sT0}, s{sT0}, s{sT1}
    s_lshl_b32 s{sT0}, s{sT0}, 10
    s_add_u32 s{sHB}, s{sT0}, {HH}
    s_add_u32 s{sHB + 1}, s{sHB}, 4096
    ''')
    for t in range(8):
        A = ACC + 16 * t
        T = 32 + 16 * (t & 1)
        O = 64 + 4 * (t & 1)
        for p in range(4):
            e(f'v_pk_mul_f32 v[{T + 2 * p}:{T + 2 * p + 1}], v[{A + 2 * p}:{A + 2 * p + 1}], v[24:25]')
        for k in range(8):
            e(f'v_exp_f32 v{T + k}, v{T + k}')
        for p in range(4):
            e(f'v_pk_mul_f32 v[{T + 8 + 2 * p}:{T + 9 + 2 * p}], v[{A + 2 * p}:{A + 2 * p + 1}], v[{A + 8 + 2 * p}:{A + 9 + 2 * p}]')
        for p in range(4):
            e(f'v_pk_fma_f32 v[{T + 2 * p}:{T + 2 * p + 1}], v[{T + 2 * p}:{T + 2 * p + 1}], v[22:23], v[22:23]')
        for k in range(8):
            e(f'v_rcp_f32 v{T + k}, v{T + k}')
        for p in range(4):
            e(f'v_pk_mul_f32 v[{T + 8 + 2 * p}:{T + 9 + 2 * p}], v[{T + 8 + 2 * p}:{T + 9 + 2 * p}], v[{T + 2 * p}:{T + 2 * p + 1}]')
        for p in range(4):
            e(f'v_cvt_pk_bf16_f32 v{O + p}, v{T + 8 + 2 * p}, v{T + 9 + 2 * p}')
        e(f'buffer_store_dwordx4 v[{O}:{O + 3}], v122, {srd(SRD_WS)}, s{sHB + (t >> 2)} offen offset:{1024 * (t & 3)} sc1', tag='hst')
    e(f'''
    s_lshl_b32 s{sT0}, s{sB}, 1
    s_lshr_b32 s{sT1}, s{sW}, 1
    s_add_u32 s{sT0}, s{sT0}, s{sT1}
    s_lshl_b32 s{sT0}, s{sT0}, 5
    s_lshl_b32 s{sT1}, s{sA}, 1
    s_add_u32 s{sT0}, s{sT0}, s{sT1}
    s_and_b32 s{sT1}, s{sW}, 1
    s_add_u32 s{sT0}, s{sT0}, s{sT1}
    s_lshl_b32 s{sT0}, s{sT0}, 7
    s_add_u32 s{sHB}, s{sT0}, {FLAG_H}
    ''')
    stamp(e, 'G1epi')

    T = Stream()
    e = T
    e('L_tail:')
    e.wait('LGKM0')
    e('s_barrier')
    e(f'''
    s_lshr_b32 s{sT0}, s{sW}, 1
    s_and_b32 s{sT2}, s{sW}, 1
    s_lshl_b32 s{sT3}, s{sT2}, 11
    s_mul_i32 s{sT0}, s{sT0}, {CVCH}
    s_add_u32 s{sT0}, s{sT0}, {CV}
    s_add_u32 s{sT1}, s{sT0}, s{sT3}
    v_add_u32 v128, s{sT1}, v122
    v_mul_u32_u24 v129, 4160, v3
    v_lshl_add_u32 v129, v4, 1, v129
    v_add_u32 v129, s{sT0}, v129
    v_add_u32 v130, s{sT0}, v122
    v_mov_b32 v132, 0
    v_mov_b32 v133, 0
    v_mov_b32 v134, 0
    v_mov_b32 v135, 0
    ''')
    e(f'ds_write_b128 v130, v[132:135] offset:{CVR + 4096}', tag='cvw')
    e(f'ds_write_b16 v129, v120', tag='cvw')
    for c in range(2):
        L0, L1, L2 = 96 + 8 * c, 100 + 8 * c, 112 + c
        t1, t3 = 136 + 8 * c, 140 + 8 * c
        e(f'ds_write_b128 v128, v[{L0}:{L0 + 3}] offset:{32 + 1024 * c}', tag='cvw')
        e(f'ds_write_b128 v128, v[{L1}:{L1 + 3}] offset:{2 * 4160 + 32 + 1024 * c}', tag='cvw')
        for n in range(4):
            e(f'v_alignbit_b32 v{t1 + n}, v{L1 + n}, v{L0 + n}, 16')
        e(f'ds_write_b128 v128, v[{t1}:{t1 + 3}] offset:{4160 + 32 + 1024 * c}', tag='cvw')
        for n in range(4):
            hi = f'v{L1 + n + 1}' if n < 3 else f'v{L2}'
            e(f'v_alignbit_b32 v{t3 + n}, {hi}, v{L1 + n}, 16')
        e(f'ds_write_b128 v128, v[{t3}:{t3 + 3}] offset:{3 * 4160 + 32 + 1024 * c}', tag='cvw')
    e(f'ds_write_b128 v128, v[84:87] offset:{CVR}', tag='cvw')
    e(f'ds_write_b128 v128, v[88:91] offset:{CVR + 1024}', tag='cvw')
    e(f'''
    v_add_u32 v152, 1, v4
    v_and_b32 v153, 3, v152
    v_mul_u32_u24 v153, 4160, v153
    v_and_b32 v152, 28, v152
    v_lshl_add_u32 v153, v152, 1, v153
    v_lshl_add_u32 v153, v3, 4, v153
    s_lshl_b32 s{sT3}, s{sT2}, 8
    s_add_u32 s{sT3}, s{sT3}, s{sT0}
    v_add_u32 v70, s{sT3}, v153
    v_lshlrev_b32 v153, 5, v4
    v_lshlrev_b32 v154, 4, v3
    v_sub_u32 v154, v154, v153
    s_add_u32 s{sT3}, s{sT3}, {CVR + 480}
    v_add_u32 v71, s{sT3}, v154
    v_lshlrev_b32 v154, 3, v3
    v_add_u32 v154, v154, v153
    s_lshl_b32 s{sT3}, s{sT2}, 11
    s_sub_u32 s{sT3}, s{sT0}, s{sT3}
    s_add_u32 s{sT3}, s{sT3}, {CVR + 4088 - 1536}
    v_sub_u32 v69, s{sT3}, v154
    v_lshlrev_b32 v121, 16, v121
    v_and_b32 v154, 1, v3
    v_lshl_add_u32 v153, v154, 9, v153
    v_lshrrev_b32 v154, 1, v3
    v_lshl_add_u32 v68, v154, 4, v153
    ''')
    e.wait('cvw')
    e('s_barrier')
    stamp(e, 'cvsetup')
    CA = 32
    FR = [128, 192]

    def cv_reads(mu):
        f = FR[mu & 1]
        out = []
        for k in range(8):
            out.append(I(f'ds_read_b64 v[{f + 4 * k}:{f + 4 * k + 1}], v70 offset:{512 * k + 64 * mu}'))
            out.append(I(f'ds_read_b64 v[{f + 4 * k + 2}:{f + 4 * k + 3}], v70 offset:{512 * k + 64 * mu + 8}'))
            out.append(I(f'ds_read_b128 v[{f + 32 + 4 * k}:{f + 32 + 4 * k + 3}], v71 offset:{3584 - 512 * k + 64 * mu}'))
        return out
    mains = []
    for mu in range(4):
        f = FR[mu & 1]
        for nt in range(8):
            for mp in range(nt + 1):
                c = '0' if (mu == 0 and mp == 0) else f'v[{CA + 4 * nt}:{CA + 4 * nt + 3}]'
                mains.append(I(f'v_mfma_f32_16x16x32_bf16 v[{CA + 4 * nt}:{CA + 4 * nt + 3}], v[{f + 4 * mp}:{f + 4 * mp + 3}], v[{f + 32 + 4 * (nt - mp)}:{f + 32 + 4 * (nt - mp) + 3}], {c}'))
    gaps = {}
    gaps[-1] = cv_reads(0)
    for mu in range(3):
        spread(gaps, cv_reads(mu + 1), 36 * mu + 1, 36 * mu + 30)
    for i in range(7):
        g0 = 2 + 7 * i
        gaps.setdefault(g0, []).append(WAIT(f'wd{i}'))
        spread(gaps, wd_reads(i), g0, g0 + 5)
        d = wd_dma(7 + i)
        d[0] = [WAIT(f'wr{i}')] + d[0]
        spread(gaps, d, g0 + 9, g0 + 15)
    s = Stream()
    s.wait('hst')
    set_flag(s, sHB, None, False)
    gaps.setdefault(40, []).extend(s.l)
    for i in range(7):
        g0 = 80 + 9 * i
        gaps.setdefault(g0, []).append(WAIT(f'wd{7 + i}'))
        spread(gaps, wd_reads(7 + i), g0, g0 + 8)
    s = Stream()
    s(f'''
    s_lshl_b32 s{sT0}, s{sRB2}, 12
    s_add_u32 s{sT0}, s{sT0}, {FLAG_H}
    v_min_u32 v126, 27, v1
    v_lshl_add_u32 v126, v126, 7, s{sT0}
    ''')
    poll_issue(s, 126, 127)
    gaps.setdefault(130, []).extend(s.l)
    e.add(weave(mains, gaps))
    stamp(e, 'cvmain')
    e(f'''
    s_nop 7
    s_and_b32 s{sT0}, s{sW}, 1
    s_cmp_eq_u32 s{sT0}, 0
    s_cbranch_scc1 L_noswap
    ''')
    for k in range(16):
        e(f'v_swap_b32 v{CA + k}, v{CA + 16 + k}')
    e('L_noswap:')
    e(f'''
    s_xor_b32 s{sT1}, s{sW}, 1
    s_lshl_b32 s{sT1}, s{sT1}, 14
    s_add_u32 s{sT1}, s{sT1}, {WD_A}
    v_add_u32 v72, s{sWDA}, v122
    v_add_u32 v73, s{sT1}, v122
    ''')
    e.wait('wr7')
    for k in range(4):
        e(f'ds_write_b128 v72, v[{CA + 16 + 4 * k}:{CA + 19 + 4 * k}] offset:{1024 * k}', tag='cx')
    for k in range(4):
        e(f'ds_read_b64 v[{96 + 2 * k}:{97 + 2 * k}], v69 offset:{1536 - 512 * k}')
    e.wait('cx')
    e('s_barrier')
    for k in range(4):
        e(f'ds_read_b128 v[{CA + 16 + 4 * k}:{CA + 19 + 4 * k}], v73 offset:{1024 * k}')
    poll_check(e, 126, 127, 'hf')
    stamp(e, 'hflag')
    HR = 128
    NH = 24
    e(f'''
    v_lshrrev_b32 v9, 1, v3
    v_lshlrev_b32 v9, 10, v9
    v_and_b32 v64, 1, v3
    v_lshl_add_u32 v9, v64, 9, v9
    v_lshl_add_u32 v9, v4, 4, v9
    s_mul_i32 s{sHL}, s{sRB2}, {2 * 112 * 1024}
    s_mul_i32 s{sT0}, s{sW}, {28 * 1024}
    s_add_u32 s{sHL}, s{sHL}, s{sT0}
    s_add_u32 s{sHL}, s{sHL}, {HH}
    ''')
    sRT = [13, 20, 21, 22]
    sRW = [23, 24, 25, 30]
    for rho in range(4):
        e(f'''
        s_add_u32 s{sT0}, s{sDB}, {rho}
        s_and_b32 s{sT0}, s{sT0}, 3
        s_lshl_b32 s{sRW[rho]}, s{sT0}, 4
        s_lshr_b32 s{sT1}, s{sT0}, 1
        s_mul_i32 s{sT1}, s{sT1}, {112 * 1024}
        s_and_b32 s{sT0}, s{sT0}, 1
        s_lshl_b32 s{sT0}, s{sT0}, 8
        s_add_u32 s{sT0}, s{sT0}, s{sT1}
        s_add_u32 s{sRT[rho]}, s{sT0}, s{sHL}
        ''')

    def h_load(n):
        rho, i = divmod(n, 14)
        r = HR + 4 * (n % NH)
        s = Stream()
        s(f's_add_u32 s{sSO2}, s{sRT[rho]}, s{sSTEP + i}')
        s(f'buffer_load_dwordx4 v[{r}:{r + 3}], v9, {srd(SRD_WS)}, s{sSO2} offen sc1')
        return s.l
    for n in range(NH):
        e.add(h_load(n))
    for k in range(4):
        a = CA + 4 * k
        e(f'v_pk_add_f32 v[{a}:{a + 1}], v[{a}:{a + 1}], v[{a + 16}:{a + 17}]')
        e(f'v_pk_add_f32 v[{a + 2}:{a + 3}], v[{a + 2}:{a + 3}], v[{a + 18}:{a + 19}]')
        d0, d1 = 96 + 2 * k, 97 + 2 * k
        e(f'''
        v_and_b32 v104, 0xffff0000, v{d1}
        v_lshlrev_b32 v105, 16, v{d1}
        v_and_b32 v106, 0xffff0000, v{d0}
        v_lshlrev_b32 v107, 16, v{d0}
        v_fmac_f32 v{a}, v121, v104
        v_fmac_f32 v{a + 1}, v121, v105
        v_fmac_f32 v{a + 2}, v121, v106
        v_fmac_f32 v{a + 3}, v121, v107
        v_cvt_pk_bf16_f32 v{108 + 2 * k}, v{a}, v{a + 1}
        v_cvt_pk_bf16_f32 v{109 + 2 * k}, v{a + 2}, v{a + 3}
        ''')
    for ip in range(2):
        b = 108 + 4 * ip
        e(f'v_permlane16_swap_b32 v{b}, v{b + 2}')
        e(f'v_permlane16_swap_b32 v{b + 1}, v{b + 3}')
        e(f'buffer_store_dwordx4 v[{b}:{b + 3}], v68, {srd(SRD_WS)}, s{sSOW} offen offset:{1024 * ip} sc1', tag='yst')
    stamp(e, 'cvdone')
    GA = [32, 48]
    OO = 64
    XX = 80
    s = Stream()
    s(f'''
    s_lshl_b32 s{sT0}, s{sRB2}, 16
    s_lshl_b32 s{sT1}, s{sDB}, 7
    s_add_u32 s{sT0}, s{sT0}, s{sT1}
    s_lshl_b32 s{sT1}, s{sW}, 5
    s_add_u32 s{sT0}, s{sT0}, s{sT1}
    v_lshlrev_b32 v120, 10, v4
    v_lshl_add_u32 v120, v3, 3, v120
    v_add_u32 v120, s{sT0}, v120
    s_lshl_b32 s{sT0}, s{sRB2}, 9
    s_add_u32 s{sT0}, s{sT0}, {STATS}
    v_lshl_add_u32 v123, v4, 3, s{sT0}
    s_lshl_b32 s{sT0}, s{sW}, 10
    s_add_u32 s{sT0}, s{sT0}, {RED}
    v_add_u32 v124, s{sT0}, v122
    s_lshl_b32 s{sT0}, s{sW}, 12
    s_add_u32 s{sT0}, s{sT0}, {RED}
    v_add_u32 v125, s{sT0}, v122
    s_lshl_b32 s{sT0}, s{sDB}, 12
    s_add_u32 s{sT0}, s{sT0}, {FLAG_Y}
    v_and_b32 v126, 31, v1
    v_lshl_add_u32 v126, v126, 7, s{sT0}
    ''')
    g2_setup = s.l
    mains = []
    for rho in range(4):
        for i in range(14):
            n = 14 * rho + i
            r = HR + 4 * (n % NH)
            for dt in range(4):
                a = GA[rho & 1] + 4 * dt
                c = '0' if i == 0 else f'v[{a}:{a + 3}]'
                mains.append(I(f'v_mfma_f32_16x16x32_bf16 v[{a}:{a + 3}], a[{16 * i + 4 * dt}:{16 * i + 4 * dt + 3}], v[{r}:{r + 3}], {c}'))
    gaps = {}
    spread(gaps, [[x] for x in g2_setup], 0, 20)
    for n in range(NH, 56):
        gaps.setdefault(4 * (n - NH) + 3, []).extend(h_load(n))
    s = Stream()
    for rho in range(4):
        s(f's_lshl_b32 s{sT0}, s{sRW[rho]}, 10')
        s(f'buffer_load_dwordx2 v[{XX + 2 * rho}:{XX + 2 * rho + 1}], v120, {srd(SRD_X)}, s{sT0} offen')
        s(f's_lshl_b32 s{sT1}, s{sRW[rho]}, 3')
        s(f'buffer_load_dwordx2 v[{88 + 2 * rho}:{89 + 2 * rho}], v123, {srd(SRD_WS)}, s{sT1} offen sc1')
    spread(gaps, [s.l[0:2], s.l[2:4], s.l[4:6], s.l[6:8], s.l[8:10], s.l[10:12], s.l[12:14], s.l[14:16]], 22, 50)
    s = Stream()
    s.wait('yst')
    s('s_barrier')
    s(f's_lshl_b32 s{sT2}, s{sXCD}, 12\ns_lshl_b32 s{sT3}, s{sJ}, 7\ns_add_u32 s{sT2}, s{sT2}, s{sT3}\ns_add_u32 s{sT2}, s{sT2}, {FLAG_Y}')
    gaps.setdefault(28, []).extend(s.l + flag_block(sT2, 'L_yf'))

    def red_write(rho):
        out = []
        for dt in range(4):
            a = GA[rho & 1] + 4 * dt
            out.append(I(f'ds_write_b128 v124, v[{a}:{a + 3}] offset:{16384 * (rho & 1) + 4096 * dt}', tag=f'rw{rho}'))
        return out

    def red_read(rho, base):
        return [I(f'ds_read_b128 v[{base + 4 * sw}:{base + 4 * sw + 3}], v125 offset:{16384 * (rho & 1) + 1024 * sw}') for sw in range(4)]

    def red_sum(rho, base):
        o = OO + 4 * rho
        s = Stream()
        s(f'''
        v_pk_add_f32 v[{base}:{base + 1}], v[{base}:{base + 1}], v[{base + 4}:{base + 5}]
        v_pk_add_f32 v[{base + 2}:{base + 3}], v[{base + 2}:{base + 3}], v[{base + 6}:{base + 7}]
        v_pk_add_f32 v[{base + 8}:{base + 9}], v[{base + 8}:{base + 9}], v[{base + 12}:{base + 13}]
        v_pk_add_f32 v[{base + 10}:{base + 11}], v[{base + 10}:{base + 11}], v[{base + 14}:{base + 15}]
        v_pk_add_f32 v[{o}:{o + 1}], v[{base}:{base + 1}], v[{base + 8}:{base + 9}]
        v_pk_add_f32 v[{o + 2}:{o + 3}], v[{base + 2}:{base + 3}], v[{base + 10}:{base + 11}]
        ''')
        return s.l

    RT = 8
    RT = 10

    def z_prep(rho):
        s = Stream()
        z = 104 + 4 * rho
        x0, x1, mu_, cc, y0, y1 = XX + 2 * rho, XX + 2 * rho + 1, 88 + 2 * rho, 89 + 2 * rho, 96 + 2 * rho, 97 + 2 * rho
        s(f'''
        v_rsq_f32 v{cc}, v{cc}
        v_lshlrev_b32 v{z}, 16, v{x0}
        v_and_b32 v{z + 1}, 0xffff0000, v{x0}
        v_lshlrev_b32 v{z + 2}, 16, v{x1}
        v_and_b32 v{z + 3}, 0xffff0000, v{x1}
        v_sub_f32 v{z}, v{z}, v{mu_}
        v_sub_f32 v{z + 1}, v{z + 1}, v{mu_}
        v_sub_f32 v{z + 2}, v{z + 2}, v{mu_}
        v_sub_f32 v{z + 3}, v{z + 3}, v{mu_}
        v_lshlrev_b32 v26, 16, v{y0}
        v_and_b32 v27, 0xffff0000, v{y0}
        v_lshlrev_b32 v28, 16, v{y1}
        v_and_b32 v29, 0xffff0000, v{y1}
        v_mul_f32 v{z}, v{z}, v{cc}
        v_mul_f32 v{z + 1}, v{z + 1}, v{cc}
        v_mul_f32 v{z + 2}, v{z + 2}, v{cc}
        v_mul_f32 v{z + 3}, v{z + 3}, v{cc}
        v_mul_f32 v{z}, v{z}, v26
        v_mul_f32 v{z + 1}, v{z + 1}, v27
        v_mul_f32 v{z + 2}, v{z + 2}, v28
        v_mul_f32 v{z + 3}, v{z + 3}, v29
        ''')
        return s.l

    def final(rho):
        s = Stream()
        o, z, x0, x1 = OO + 4 * rho, 104 + 4 * rho, XX + 2 * rho, XX + 2 * rho + 1
        t = 240
        for r in range(4):
            s(f'v_mul_f32 v{t + r}, 0xbfb8aa3b, v{o + r}')
        for r in range(4):
            s(f'v_exp_f32 v{t + r}, v{t + r}')
        for r in range(4):
            s(f'v_mul_f32 v{o + r}, v{o + r}, v{z + r}')
        for r in range(4):
            s(f'v_add_f32 v{t + r}, 1.0, v{t + r}')
        for r in range(4):
            s(f'v_rcp_f32 v{t + r}, v{t + r}')
        s(f'''
        v_lshlrev_b32 v{t + 4}, 16, v{x0}
        v_and_b32 v{t + 5}, 0xffff0000, v{x0}
        v_lshlrev_b32 v{t + 6}, 16, v{x1}
        v_and_b32 v{t + 7}, 0xffff0000, v{x1}
        ''')
        for r in range(4):
            s(f'v_fmac_f32 v{t + 4 + r}, v{o + r}, v{t + r}')
        s(f'''
        v_cvt_pk_bf16_f32 v{t + 8}, v{t + 4}, v{t + 5}
        v_cvt_pk_bf16_f32 v{t + 9}, v{t + 6}, v{t + 7}
        s_lshl_b32 s{sT0}, s{sRW[rho]}, 10
        buffer_store_dwordx2 v[{t + 8}:{t + 9}], v120, {srd(SRD_OUT)}, s{sT0} offen {opt.out_st}
        ''')
        return s.l

    for rho in range(3):
        g = 56 * (rho + 1)
        spread(gaps, red_write(rho), g + 4, g + 7)
        s = Stream()
        s.wait(f'rw{rho}')
        s('s_barrier')
        gaps.setdefault(g + 11, []).extend(s.l)
        spread(gaps, red_read(rho, RT), g + 12, g + 15)
        spread(gaps, red_sum(rho, RT), g + 20, g + 25)
    s = Stream()
    poll_issue(s, 126, 127)
    gaps.setdefault(56 + 40, []).extend(s.l)
    s = Stream()
    poll_check(s, 126, 127, 'yf')
    s(f'''
    s_lshl_b32 s{sT0}, s{sDB}, 6
    s_lshl_b32 s{sT1}, s{sW}, 4
    s_add_u32 s{sT0}, s{sT0}, s{sT1}
    s_lshl_b32 s{sT0}, s{sT0}, 12
    s_lshl_b32 s{sT1}, s{sRB2}, 7
    s_add_u32 s{sT0}, s{sT0}, s{sT1}
    s_add_u32 s{sT0}, s{sT0}, {YT}
    s_add_u32 s{sT1}, s{sT0}, 32768
    v_lshlrev_b32 v30, 12, v5
    v_lshl_add_u32 v30, v6, 4, v30
    buffer_load_dwordx4 v[244:247], v30, {srd(SRD_WS)}, s{sT0} offen sc1
    buffer_load_dwordx4 v[248:251], v30, {srd(SRD_WS)}, s{sT1} offen sc1
    ''')
    gaps.setdefault(112 - 4, []).extend(s.l)
    s = Stream()
    s(f'''
    s_mul_i32 s{sT0}, s{sW}, 2560
    s_add_u32 s{sT0}, s{sT0}, {YS}
    v_mul_u32_u24 v30, 160, v5
    v_lshl_add_u32 v30, v6, 4, v30
    v_add_u32 v30, s{sT0}, v30
    v_lshl_add_u32 v31, v3, 2, v7
    v_mul_u32_u24 v31, 160, v31
    v_and_b32 v26, 3, v1
    v_lshl_add_u32 v31, v26, 3, v31
    v_add_u32 v31, s{sT0}, v31
    ''')
    spread(gaps, [[x] for x in s.l], 112 + 26, 112 + 35)
    s = Stream()
    s('ds_write_b128 v30, v[244:247]', tag='ys')
    s(f'ds_write_b128 v30, v[248:251] offset:{8 * 160}', tag='ys')
    spread(gaps, [[x] for x in s.l], 112 + 40, 112 + 41)
    s = Stream()
    s.wait('ys')
    for rho in range(4):
        s(f's_lshl_b32 s{sT0}, s{sRW[rho]}, 1\nv_add_u32 v26, s{sT0}, v31')
        s(f'ds_read_b64_tr_b16 v[{96 + 2 * rho}:{97 + 2 * rho}], v26')
    gaps.setdefault(112 + 46, []).extend(s.l)
    work = z_prep(0) + final(0) + z_prep(1) + final(1)
    spread(gaps, [[x] for x in work], 112 + 50, 168 + 27)
    work = z_prep(2) + final(2) + z_prep(3)
    spread(gaps, [[x] for x in work], 168 + 28, 168 + 55)
    e.add(weave(mains, gaps))
    stamp(e, 'G2main')
    e.add(red_write(3))
    e.wait('rw3')
    e('s_barrier')
    e.add(red_read(3, RT))
    e.add(red_sum(3, RT))
    e.add(final(3))
    e(f'''
    s_or_b32 s{sT0}, s2, s{sW}
    s_cmp_lg_u32 s{sT0}, 0
    s_cbranch_scc1 L_fin
    v_lshlrev_b32 v126, 7, v1
    v_add_u32 v126, {FLAG_P}, v126
    ''')
    for k in range(4):
        poll_issue(e, 126, 127)
        poll_check(e, 126, 127, f'ep{k}')
        e('v_add_u32 v126, 8192, v126')
    e(f's_mov_b32 s{sT0}, {EPOCH}')
    set_flag(e, sT0, None, False)
    e('L_fin:')
    if opt.stamps:
        stamp(e, 'end')
        e('s_waitcnt lgkmcnt(0)')
        k = len(stamps) - 1
        e.add([raw(f'v_writelane_b32 v2, s{SP[k & 1]}, {k}')])
        e(f'''
        s_lshl_b32 s{sT0}, s2, 2
        s_add_u32 s{sT0}, s{sT0}, s{sW}
        s_lshl_b32 s{sT0}, s{sT0}, 6
        s_add_u32 s{sT0}, s{sT0}, {STAMP}
        v_lshl_add_u32 v10, v1, 2, s{sT0}
        s_mov_b64 exec, 0xffff
        buffer_store_dword v2, v10, {srd(SRD_WS)}, 0 offen
        ''')
        if opt.spin:
            a, b, m, wg = opt.spin
            e(f'''
            s_cmp_lg_u32 s2, {wg}
            s_cbranch_scc1 L_end
            s_cmp_lg_u32 s{sW}, 0
            s_cbranch_scc1 L_end
            s_nop 4
            v_readlane_b32 s{sT0}, v2, {stamps.index(a)}
            v_readlane_b32 s{sT1}, v2, {stamps.index(b)}
            v_readlane_b32 s{sT2}, v2, {k}
            s_nop 4
            s_sub_u32 s{sT0}, s{sT1}, s{sT0}
            s_mul_i32 s{sT0}, s{sT0}, {m}
            s_min_u32 s{sT0}, s{sT0}, 100000
            s_add_u32 s{sT0}, s{sT0}, s{sT2}
L_dspin:
            s_memrealtime s[26:27]
            s_waitcnt lgkmcnt(0)
            s_sub_u32 s{sT1}, s26, s{sT0}
            s_cmp_lt_i32 s{sT1}, 0
            s_cbranch_scc1 L_dspin
            ''')
    e('L_end:')
    e('s_endpgm')

    S = Stream()
    e = S
    e('L_srole:')
    e(f'''
    s_sub_u32 s{sA}, s{sJ}, 28
    s_and_b32 s{sT0}, s{sXCD}, 3
    s_lshl_b32 s{sT1}, s{sT0}, 9
    s_lshr_b32 s{sT2}, s{sXCD}, 2
    s_lshl_b32 s{sT3}, s{sT2}, 8
    s_add_u32 s{sT1}, s{sT1}, s{sT3}
    s_lshl_b32 s{sT3}, s{sA}, 6
    s_add_u32 s{sT1}, s{sT1}, s{sT3}
    s_lshl_b32 s{sT3}, s{sW}, 4
    s_add_u32 s{sB}, s{sT1}, s{sT3}
    s_lshl_b32 s{sSOX}, s{sB}, 10
    v_lshlrev_b32 v122, 4, v1
    s_lshl_b32 s{sT0}, s{sT0}, 2
    s_add_u32 s{sROT}, s{sT0}, s{sA}
    ''')
    for r in range(16):
        if r and r % 4 == 0:
            e(f's_add_u32 s{sSOX}, s{sSOX}, 4096')
        e(f'buffer_load_dwordx4 v[{128 + 4 * r}:{131 + 4 * r}], v122, {srd(SRD_X)}, s{sSOX} offen offset:{1024 * (r % 4)} {opt.ld_in}')
    e(f'''
    s_and_b32 s{sT0}, s{sROT}, 1
    s_cmp_eq_u32 s{sT0}, 0
    s_cselect_b32 s{SRD_W}, s22, s24
    s_cselect_b32 s{SRD_W + 1}, s23, s25
    s_mul_i32 s{sT2}, s{sT2}, 7
    s_lshr_b32 s{sT1}, s{sROT}, 1
    s_add_u32 s{sT2}, s{sT2}, s{sT1}
    s_mul_i32 s{sM0W}, s{sT0}, 1792
    s_lshl_b32 s{sT1}, s{sT2}, 7
    s_add_u32 s{sM0W}, s{sM0W}, s{sT1}
    s_lshl_b32 s{sM0W}, s{sM0W}, 3
    s_add_u32 s{sM0W}, s{sM0W}, {CS}
    s_lshl_b32 s{sT2}, s{sT2}, 8
    s_mul_i32 s{sT1}, s{sW}, {128 * 3584}
    s_add_u32 s{sT2}, s{sT2}, s{sT1}
    s_cmp_ge_u32 s{sROT}, 14
    s_cselect_b32 s{sT2}, 0x80000000, s{sT2}
    s_cselect_b32 s{sM0W}, 0x80000000, s{sM0W}
    v_mul_u32_u24 v84, 3584, v3
    v_lshl_add_u32 v84, v4, 4, v84
    v_add_u32 v84, s{sT2}, v84
    s_mov_b32 s{sSOW}, 0
    ''')
    CW = 192

    def cs_load(n):
        s = Stream()
        r = CW + 4 * (n % 15)
        s(f'buffer_load_dwordx4 v[{r}:{r + 3}], v84, {srd(SRD_W)}, s{sSOW} offen {opt.ld_in}')
        s(f's_add_u32 s{sSOW}, s{sSOW}, 14336')
        return s.l
    for n in range(15):
        e.add(cs_load(n))
    code_prefetch(e, 'L_pcs')
    late_srds(e)
    stamp(e, None, 1)
    p_compute(e)
    stamp(e, None, 2)
    e('v_mov_b32 v85, 0x3f803f80\nv_mov_b32 v86, 0x3f80\nv_mov_b32 v87, 0x3f800000')
    for r in range(16):
        b = 128 + 4 * r
        e(f'v_dot2_f32_bf16 v{20 + r}, v{b}, v85, 0')
        e(f'v_dot2_f32_bf16 v{36 + r}, v{b}, v{b}, 0')
        for k in range(1, 4):
            e(f'v_dot2_f32_bf16 v{20 + r}, v{b + k}, v85, v{20 + r}')
            e(f'v_dot2_f32_bf16 v{36 + r}, v{b + k}, v{b + k}, v{36 + r}')
    for n in range(32):
        r = CW + 4 * (n % 15)
        for k in range(4):
            c0 = '0' if n == 0 else f'v{52 + 2 * k}'
            c1 = '0' if n == 0 else f'v{53 + 2 * k}'
            e(f'v_dot2_f32_bf16 v{52 + 2 * k}, v{r + k}, v86, {c0}')
            e(f'v_dot2_f32_bf16 v{53 + 2 * k}, v{r + k}, v87, {c1}')
        if n + 15 < 32:
            e.add(cs_load(n + 15))
    e(f'''
    s_lshl_b32 s{sT0}, s{sW}, 11
    v_lshlrev_b32 v60, 9, v3
    v_lshl_add_u32 v60, v4, 5, v60
    v_add_u32 v60, s{sT0}, v60
    ''')
    e(f'ds_write_b128 v60, v[52:55] offset:{SCS}', tag='scs')
    e(f'ds_write_b128 v60, v[56:59] offset:{SCS + 16}', tag='scs')
    for base in (20, 36):
        for r in range(8):
            e(f'v_permlane32_swap_b32 v{base + r}, v{base + r + 8}')
        for r in range(8):
            e(f'v_add_f32 v{base + r}, v{base + r}, v{base + r + 8}')
        for r in range(4):
            e(f'v_permlane16_swap_b32 v{base + r}, v{base + r + 4}')
        for r in range(4):
            e(f'v_add_f32 v{base + r}, v{base + r}, v{base + r + 4}')
    for sh in (8, 4, 2, 1):
        for base in (20, 36):
            for r in range(4):
                e(f'v_add_f32_dpp v{base + r}, v{base + r}, v{base + r} row_ror:{sh} row_mask:0xf bank_mask:0xf')
    for base in (20, 36):
        for r in range(1, 4):
            e(f'v_cmp_eq_u32 vcc, {r}, v4')
            e(f'v_cndmask_b32 v{base}, v{base}, v{base + r}, vcc')
    e(f'''
    v_mul_f32 v20, 0x3b000000, v20
    v_mul_f32 v36, 0x3b000000, v36
    v_fma_f32 v21, -v20, v20, v36
    v_max_f32 v21, 0, v21
    v_add_f32 v21, 0x3727c5ac, v21
    v_and_b32 v22, 1, v3
    v_lshl_add_u32 v22, v22, 2, v4
    v_lshrrev_b32 v23, 1, v3
    v_lshl_add_u32 v22, v23, 3, v22
    v_add_u32 v22, s{sB}, v22
    v_lshlrev_b32 v22, 3, v22
    v_add_u32 v22, {STATS}, v22
    v_mov_b32 v23, 0x80000000
    v_cmp_gt_u32 vcc, 4, v4
    v_cndmask_b32 v22, v23, v22, vcc
    ''')
    e(f'buffer_store_dwordx2 v[20:21], v22, {srd(SRD_WS)}, 0 offen sc1', tag='sst')
    e.wait('scs')
    e('s_barrier')
    e('v_and_b32 v61, 127, v0\nv_lshlrev_b32 v62, 2, v61')
    for k in range(16):
        e(f'ds_read_b32 v{24 + k}, v62 offset:{SCS + 512 * k}')
    for stp in (8, 4, 2, 1):
        for k in range(stp):
            e(f'v_add_f32 v{24 + k}, v{24 + k}, v{24 + k + stp}')
    e(f'''
    v_cvt_pk_bf16_f32 v26, v24, v24
    v_lshlrev_b32 v25, 16, v26
    v_sub_f32 v25, v24, v25
    v_cvt_pk_bf16_f32 v27, v25, v25
    v_lshlrev_b32 v61, 3, v61
    v_add_u32 v61, s{sM0W}, v61
    ''')
    e(f'buffer_store_dwordx2 v[26:27], v61, {srd(SRD_WS)}, 0 offen sc1', tag='sst')
    e.wait('VM0')
    e('s_barrier')
    e(f'''
    s_lshl_b32 s{sT0}, s{sXCD}, 2
    s_add_u32 s{sT0}, s{sT0}, s{sA}
    s_lshl_b32 s{sT0}, s{sT0}, 7
    s_add_u32 s{sT0}, s{sT0}, {FLAG_S}
    ''')
    e.add(flag_block(sT0, 'L_sf1'))
    e(f's_lshl_b32 s{sT0}, s{sXCD}, 12\ns_lshl_b32 s{sT1}, s{sJ}, 7\ns_add_u32 s{sT0}, s{sT0}, s{sT1}\ns_add_u32 s{sT0}, s{sT0}, {FLAG_P}')
    e.add(flag_block(sT0, 'L_sf2'))
    wd_addr_setup(e)
    for i in range(7):
        for grp in wd_dma(i):
            e.add(grp)
    p_poll_setup(e)
    cv_loads(e)
    u_loads(e, 'pfs')
    e(f's_mov_b32 s{sHB}, {FLAG_H + 0x1ff80}')
    for k in range(3, stamps.index('G1epi') + 1 if opt.stamps else 0):
        e('s_waitcnt lgkmcnt(0)')
        stamp(e, None, k)
    e.wait('ALL')
    e('s_nop 4')
    e('s_branch L_tail')

    def fin(lst):
        r = resolve_waits(lst)
        for it in r:
            if it.kind == 'vmem_untracked':
                it.kind = 'vmem'
        r, n = insert_nops(r)
        return r, n
    A, n1 = fin(P0.l + G1.l + T.l)
    mark = I('L_mark:')
    Bs, n2 = fin(P0.l + [mark] + S.l)
    Bs = Bs[Bs.index(mark) + 1:]
    body = render(A) + render(Bs) + 'L_codeend:\n'
    hdr = open(os.path.join(os.path.dirname(os.path.abspath(__file__)), 'header.txt')).read()
    if stamps:
        hdr = '; stamps: ' + ' '.join(stamps) + '\n' + hdr
    launch = '; @launch grid=(256,1,1) block=(256,1,1) lds=163840\n'
    extra_k = ''
    if opt.tiny:
        main = f'; @launch kernel={NAME}_kernel grid=(256,1,1) block=(256,1,1) lds=163840\n'
        tiny = '; @launch kernel=tiny_kernel grid=(1,1,1) block=(64,1,1) lds=0\n'
        launch = ''.join(main if c == 'M' else tiny for c in opt.tiny)
        extra_k = '''.text
.globl tiny_kernel
.p2align 8
.type tiny_kernel,@function
tiny_kernel:
    s_endpgm
.section .rodata,"a"
.p2align 6
.amdhsa_kernel tiny_kernel
  .amdhsa_next_free_vgpr 8
  .amdhsa_next_free_sgpr 16
  .amdhsa_accum_offset 8
  .amdhsa_group_segment_fixed_size 0
  .amdhsa_kernarg_size 104
  .amdhsa_user_sgpr_count 2
  .amdhsa_user_sgpr_kernarg_segment_ptr 1
  .amdhsa_system_sgpr_workgroup_id_x 1
.end_amdhsa_kernel
'''
    txt = hdr + launch + f'''.amdgcn_target "amdgcn-amd-amdhsa--gfx950"
.text
.globl {NAME}_kernel
.p2align 8
.type {NAME}_kernel,@function
{NAME}_kernel:
''' + body + f'''.section .rodata,"a"
.p2align 6
.amdhsa_kernel {NAME}_kernel
  .amdhsa_next_free_vgpr 512
  .amdhsa_next_free_sgpr 102
  .amdhsa_accum_offset 256
  .amdhsa_group_segment_fixed_size 0
  .amdhsa_kernarg_size 104
  .amdhsa_user_sgpr_count 2
  .amdhsa_user_sgpr_kernarg_segment_ptr 1
  .amdhsa_system_sgpr_workgroup_id_x 1
.end_amdhsa_kernel
''' + extra_k
    return txt, stamps, (len(A), len(Bs), n1, n2)


if __name__ == '__main__':
    opt = Opt()
    out = sys.argv[1] if len(sys.argv) > 1 else f'cdna_kernels/{NAME}.s'
    for a in sys.argv[2:]:
        k, v = a.split('=')
        setattr(opt, k, eval(v))
    txt, stamps, info = gen(opt)
    open(out, 'w').write(txt)
    print('wrote', out, 'instrs/nops', info, 'stamps', stamps)
```

```python
import re

REG_RE = re.compile(r'^(-?)(?:abs\()?([vas])(?:(\d+)|\[(\d+):(\d+)\])\)?$')


def regs_of(tok):
    tok = tok.strip()
    if tok == 'vcc':
        return {('s', 'vcc')}
    if tok == 'exec':
        return {('s', 'exec')}
    if tok == 'm0':
        return {('s', 'm0')}
    m = REG_RE.match(tok)
    if not m:
        return set()
    k = m.group(2)
    if m.group(3) is not None:
        return {(k, int(m.group(3)))}
    return {(k, i) for i in range(int(m.group(4)), int(m.group(5)) + 1)}


TRANS = ('v_exp_f32', 'v_log_f32', 'v_rcp_f32', 'v_rsq_f32', 'v_sqrt_f32', 'v_sin_f32', 'v_cos_f32')


class I:
    __slots__ = ('text', 'op', 'kind', 'dst', 'src', 'tag', 'wait', 'srcc', 'passes', 'wide', 'dpp', 'ops')

    def __init__(self, text, tag=None, wait=None):
        self.text = text
        self.tag = tag
        self.wait = wait
        self.dst = set()
        self.src = set()
        self.srcc = set()
        self.passes = 0
        self.wide = False
        self.dpp = False
        self.ops = []
        t = text.split(';')[0].strip()
        if wait is not None:
            self.op = 'WAIT'
            self.kind = 'wait'
            return
        if t.endswith(':') or t.startswith('.') or t == '':
            self.op = t
            self.kind = 'label' if t.endswith(':') else 'dir'
            return
        parts = t.split(None, 1)
        op = parts[0]
        self.op = op
        rest = parts[1] if len(parts) > 1 else ''
        toks = []
        cur = ''
        depth = 0
        for ch in rest:
            if ch in '[(':
                depth += 1
            if ch in '])':
                depth -= 1
            if ch == ',' and depth == 0:
                toks.append(cur.strip())
                cur = ''
            else:
                cur += ch
        if cur.strip():
            toks.append(cur.strip())
        mods = ''
        if toks:
            last = toks[-1].split()
            toks[-1] = last[0]
            mods = ' '.join(last[1:])
        self.ops = toks
        R = [regs_of(x) for x in toks]
        base = op.replace('_e32', '').replace('_e64', '').replace('_dpp', '').replace('_sdwa', '')
        if op.startswith('v_mfma'):
            self.kind = 'mfma'
            self.dst = R[0]
            self.src = R[1] | R[2] | R[3]
            self.srcc = R[3]
            self.passes = 8 if '32x32x16' in op else 4
        elif op.startswith('ds_read') or op.startswith('ds_bpermute') or op.startswith('ds_swizzle'):
            self.kind = 'lds'
            self.dst = R[0]
            self.src = set().union(*R[1:])
        elif op.startswith('ds_write'):
            self.kind = 'lds'
            self.src = set().union(*R)
        elif op.startswith('buffer_load') or op.startswith('global_load'):
            self.kind = 'vmem'
            if ' lds' in (' ' + mods) or 'load_lds' in op:
                self.src = set().union(*R) | {('s', 'm0')}
                self.kind = 'dma'
            else:
                self.dst = R[0]
                self.src = set().union(*R[1:])
        elif op.startswith('buffer_store') or op.startswith('global_store') or 'atomic' in op:
            self.kind = 'vmem'
            self.src = set().union(*R)
            self.wide = op.endswith('x4') or op.endswith('x3')
        elif op.startswith('s_load') or op.startswith('s_memtime') or op.startswith('s_memrealtime'):
            self.kind = 'smem'
            self.dst = R[0]
            self.src = set().union(*R[1:]) if len(R) > 1 else set()
        elif op in ('s_waitcnt', 's_nop', 's_barrier', 's_sleep', 's_setprio', 's_endpgm') or op.startswith('s_cbranch') or op == 's_branch':
            self.kind = 'sopp'
        elif op.startswith('s_'):
            self.kind = 'salu'
            if op.startswith('s_cmp') or op.startswith('s_bitcmp'):
                self.src = set().union(*R)
            else:
                self.dst = R[0]
                self.src = set().union(*R[1:]) if len(R) > 1 else set()
        elif op.startswith('v_'):
            self.kind = 'valu'
            if base.startswith('v_permlane') or base == 'v_swap_b32':
                self.dst = R[0] | R[1]
                self.src = R[0] | R[1]
            elif base in ('v_add_co_u32', 'v_addc_co_u32', 'v_sub_co_u32'):
                self.dst = R[0] | R[1]
                self.src = set().union(*R[2:])
            else:
                self.dst = R[0]
                self.src = set().union(*R[1:]) if len(R) > 1 else set()
                if base in ('v_fmac_f32', 'v_dot2c_f32_bf16'):
                    self.src |= R[0]
                if base == 'v_cndmask_b32' and len(toks) == 3:
                    self.src |= {('s', 'vcc')}
            if '_dpp' in op or 'row_' in mods or 'quad_perm' in mods:
                self.dpp = True
                self.src |= R[0]
        else:
            raise ValueError('unknown instr: ' + text)

    def is_trans(self):
        return self.op.replace('_e32', '').replace('_e64', '') in TRANS

    def is_dot(self):
        return self.op.startswith('v_dot2')


def WAIT(*tags):
    return I('', wait=list(tags))


class Stream:
    def __init__(self):
        self.l = []

    def __call__(self, text, tag=None):
        for line in text.split('\n'):
            line = line.strip()
            if not line:
                continue
            self.l.append(I(line, tag=tag))
        return self

    def wait(self, *tags):
        self.l.append(WAIT(*tags))

    def add(self, items):
        if isinstance(items, Stream):
            items = items.l
        for it in items:
            if isinstance(it, str):
                self(it)
            else:
                self.l.append(it)


def resolve_waits(instrs, verbose=False, ahead=1):
    out = []
    vm = []
    lg = []
    smem = []

    def need(queue, pred):
        for idx in range(len(queue) - 1, -1, -1):
            if pred(queue[idx]):
                return len(queue) - 1 - idx
        return None

    for pos, ins in enumerate(instrs):
        nv = nl = None
        if ins.kind == 'wait':
            tags = set(ins.wait)
            if 'ALL' in tags:
                nv = 0 if vm else None
                nl = 0 if (lg or smem) else None
            else:
                if 'LGKM0' in tags and (lg or smem):
                    nl = 0
                if 'VM0' in tags and vm:
                    nv = 0
                a = need(vm, lambda e: e[1] in tags)
                if a is not None:
                    nv = a if nv is None else min(nv, a)
                a = need(lg, lambda e: e[1] in tags)
                if a is not None:
                    nl = a if nl is None else min(nl, a)
        elif ins.kind not in ('label', 'dir'):
            touch = ins.src | ins.dst
            if touch:
                nv = need(vm, lambda e: e[0] & touch)
                nl = need(lg, lambda e: e[0] & touch)
                if any(e & touch for e in smem):
                    nl = 0
                if ins.kind == 'mfma' and nl is not None and ahead:
                    cnt = 0
                    for nx in instrs[pos + 1:pos + 40]:
                        if nx.kind in ('label', 'wait') or nx.op == 's_barrier' or nx.op.startswith('s_cbranch'):
                            break
                        if nx.kind == 'mfma':
                            a = need(lg, lambda e: e[0] & nx.src)
                            if a is not None and a < nl:
                                if a >= 3:
                                    nl = a
                                cnt += 1
                                if cnt >= ahead:
                                    break
        if nv is not None or nl is not None:
            parts = []
            if nv is not None:
                nv = min(nv, 63)
                parts.append(f'vmcnt({nv})')
                del vm[:max(0, len(vm) - nv)]
            if nl is not None:
                nl = min(nl, 15)
                parts.append(f'lgkmcnt({nl})')
                del lg[:max(0, len(lg) - nl)]
                if nl == 0:
                    smem.clear()
            out.append(I('s_waitcnt ' + ' '.join(parts)))
        if ins.kind == 'wait':
            continue
        if ins.op == 's_waitcnt':
            m = re.search(r'vmcnt\((\d+)\)', ins.text)
            if m:
                del vm[:max(0, len(vm) - int(m.group(1)))]
            m = re.search(r'lgkmcnt\((\d+)\)', ins.text)
            if m:
                n = int(m.group(1))
                del lg[:max(0, len(lg) - n)]
                if n == 0:
                    smem.clear()
        out.append(ins)
        if ins.kind in ('vmem', 'dma'):
            vm.append((ins.dst, ins.tag))
            assert len(vm) <= 63 or True
        elif ins.kind == 'lds':
            lg.append((ins.dst, ins.tag))
        elif ins.kind == 'smem':
            if ins.op.startswith('s_load'):
                smem.append(ins.dst)
            else:
                smem.append(ins.dst)
    return out


def states(ins):
    if ins.kind in ('label', 'dir'):
        return 0
    if ins.op == 's_nop':
        return int(ins.ops[0]) + 1
    return 1


def vg(s):
    return {r for r in s if r[0] in 'va'}


def sg(s):
    return {r for r in s if r[0] == 's'}


def required(p, c):
    n = 0
    if p.kind == 'valu':
        w = vg(p.dst)
        if w:
            if c.kind == 'mfma' and (w & c.src):
                n = max(n, 2)
            if c.kind == 'valu':
                if c.dpp and (w & c.src):
                    n = max(n, 2)
                if c.op.startswith('v_permlane') and (w & c.src):
                    n = max(n, 2)
                if c.op.startswith('v_readlane') or c.op.startswith('v_readfirstlane'):
                    if w & c.src:
                        n = max(n, 1)
                if p.is_trans() and (w & c.src) and not c.is_trans():
                    n = max(n, 1)
                if p.is_trans() and (w & c.src) and c.is_trans():
                    n = max(n, 1)
            if p.is_trans() and c.kind in ('vmem', 'lds', 'dma') and (w & c.src):
                n = max(n, 1)
            if p.is_dot():
                if c.is_dot() and c.op == p.op:
                    ab = set()
                    for t in c.ops[1:3]:
                        ab |= regs_of(t)
                    if w & ab:
                        n = max(n, 3)
                elif w & (c.src | c.dst):
                    n = max(n, 3)
        ws = sg(p.dst)
        if ws:
            if c.kind == 'valu' and (ws & c.src):
                n = max(n, 2)
            if c.kind in ('vmem', 'dma') and (ws & c.src):
                n = max(n, 5)
            if c.kind in ('salu', 'smem') and (ws & c.src):
                n = max(n, 1)
            if c.op.startswith('s_cbranch_vcc') and ('s', 'vcc') in ws:
                n = max(n, 1)
    if p.kind == 'mfma':
        d = p.dst
        big = 12 if p.passes == 8 else 8
        if c.kind == 'mfma':
            ab = c.src - c.srcc
            if d & ab:
                n = max(n, big)
            if d & c.srcc:
                if not (c.srcc == d and c.passes == p.passes):
                    n = max(n, 10 if p.passes == 8 else 6)
            if (d & c.dst) and not (d & c.srcc):
                n = max(n, big)
        elif c.kind in ('valu', 'vmem', 'lds', 'dma'):
            if d & (c.src | c.dst):
                n = max(n, big)
            if c.kind == 'valu' and (p.srcc & c.dst):
                n = max(n, 7 if p.passes == 8 else 3)
    if p.kind == 'salu' and ('s', 'm0') in p.dst and c.kind == 'dma':
        n = max(n, 1)
    if p.kind == 'vmem' and p.wide:
        data = regs_of(p.ops[0]) if p.op.startswith('buffer') else regs_of(p.ops[1])
        if data & c.dst:
            n = max(n, 2 if c.kind == 'valu' else 1)
    return n


def insert_nops(instrs):
    out = []
    cnt = 0
    for c in instrs:
        if c.kind not in ('label', 'dir'):
            dist = 0
            add = 0
            for p in reversed(out):
                if dist >= 12:
                    break
                if p.kind in ('label', 'dir'):
                    continue
                r = required(p, c)
                if r > dist:
                    add = max(add, r - dist)
                dist += states(p)
            if add:
                out.append(I(f's_nop {add - 1}'))
                cnt += add
        out.append(c)
    return out, cnt


def render(instrs):
    lines = []
    for i in instrs:
        if i.kind in ('label', 'dir'):
            lines.append(i.text)
        else:
            lines.append('    ' + i.text)
    return '\n'.join(lines) + '\n'


def weave(mains, gaps):
    out = []
    out.extend(gaps.get(-1, []))
    for i, m in enumerate(mains):
        out.append(m)
        out.extend(gaps.get(i, []))
    return out


def spread(gaps, items, lo, hi):
    n = len(items)
    if n == 0:
        return
    span = hi - lo + 1
    for j, it in enumerate(items):
        g = lo + (j * span) // n
        gaps.setdefault(g, [])
        if isinstance(it, list):
            gaps[g].extend(it)
        else:
            gaps[g].append(it)


WIDEN = ('v_exp_f32', 'v_rcp_f32', 'v_rsq_f32', 'v_mov_b32', 'v_add_f32', 'v_sub_f32', 'v_mul_f32', 'v_fmac_f32',
         'v_lshlrev_b32', 'v_lshrrev_b32', 'v_and_b32', 'v_or_b32', 'v_xor_b32', 'v_add_u32', 'v_sub_u32',
         'v_subrev_u32', 'v_mul_u32_u24', 'v_min_u32', 'v_max_f32', 'v_cndmask_b32')


def instr_sizes(text):
    import subprocess, tempfile, os
    d = tempfile.mkdtemp()
    src, obj = os.path.join(d, 'a.s'), os.path.join(d, 'a.o')
    open(src, 'w').write(text)
    r = subprocess.run(['clang', '-x', 'assembler', '-target', 'amdgcn-amd-amdhsa', '-mcpu=gfx950', '-c', src, '-o', obj],
                       capture_output=True, text=True)
    assert r.returncode == 0, r.stderr[:3000]
    out = subprocess.run(['llvm-objdump', '-d', '--mcpu=gfx950', obj], capture_output=True, text=True).stdout
    sizes = []
    for line in out.splitlines():
        m = re.search(r'//\s*[0-9A-F]{12}:((?: [0-9A-F]{8})+)', line)
        if m:
            sizes.append(4 * len(m.group(1).split()))
    return sizes


def align_pass(instrs, sizes, thr=4):
    real = [i for i in instrs if i.kind not in ('label', 'dir')]
    assert len(real) == len(sizes), (len(real), len(sizes))
    size = {id(i): s for i, s in zip(real, sizes)}
    out = []
    off = 0
    nw = nn = 0
    for k, ins in enumerate(instrs):
        if ins.kind in ('label', 'dir'):
            out.append(ins)
            continue
        sz = size[id(ins)]
        if sz == 4 and off % 8 == 0:
            run = 0
            for nx in instrs[k + 1:]:
                if nx.kind in ('label', 'dir'):
                    continue
                if size[id(nx)] == 4:
                    break
                run += 1
            if run and (ins.op in WIDEN or (ins.kind == 'valu' and ins.op.startswith('v_cmp_'))):
                t = ins.text.replace(ins.op, ins.op + '_e64', 1)
                ins.text = t
                sz = 8
                nw += 1
            elif run >= thr and not ins.op.startswith('s_cbranch') and ins.op not in ('s_branch', 's_endpgm', 's_getpc_b64'):
                out.append(ins)
                out.append(I('s_nop 0'))
                off += 8
                nn += 1
                continue
        out.append(ins)
        off += sz
    return out, nw, nn
```

```python
import sys, os
sys.path.insert(0, os.path.dirname(os.path.abspath(__file__)))
from asmlib import *

NAME = 'recurrent_scan__ssm_conv_h3__swiglu_ffn__prompt'

WSBASE = 0x8000000
WSSIZE = 0x1000000
EPOCH = 0x0
FS = 5
FLAG_P = 0x2000
FLAG_T = 0x8000
FLAG_Y = 0x10000
FLAG_H = 0x20000
STATS = 0x40000
CSP = 0x48000
STAMP = 0x80000
UT = 0x100000
YT = 0x300000
HH = 0x600000

SLOT = [0, 49152, 98304]
WD_A = 98304
WD_B = 0
CV = 49152
CVCH = 21760
CVR = 16640
RED = 49152
YS = 49152 + 32768
XS = 49152 + 16384
SPW = 34816
CS1 = 159744
CS2 = 143360

sW, sXCD, sJ, sTAG, sT0 = 3, 4, 5, 6, 7
SRD_X, SRD_K, SRD_V, SRD_W, SRD_SSM, SRD_DN, SRD_OUT, SRD_WS = 36, 40, 44, 48, 52, 56, 60, 64
sA, sB, sROT = 68, 69, 70
sRB2, sDB, sC0 = 71, 72, 73
sT1, sT2, sT3, sT4 = 74, 75, 76, 77
sSPIN = 78
sM0W, sM0X, sMASK = 79, 80, 81
sSOW, sSOX = 82, 83
sHB = 84
sSTEP = 86
sWDA, sWDB = 8, 9
sHL = 11
sSO2 = 12
sRT = [13, 20, 21, 22]
sRW = [23, 24, 25, 30]
sYS = 31
sH0, sH1 = 40, 41
sXO, sSTB, sRDW, sRDR, sEXR, sFY = 14, 15, 16, 17, 18, 19
sFH, sFP, sYG, sYSB = 32, 33, 34, 35
sOWNY, sHST, sDV, sXB = 43, 44, 45, 46
sHD2, sDV2 = 100, 85
sCVB = 10


def srd(r):
    return f's[{r}:{r + 3}]'


class Opt:
    stamps = False
    spin = None
    tiny = None
    clk = 's_memrealtime'
    ld_x = ''
    ld_w = ''
    ld_kv = ''
    out_st = ''
    order = 'xr2'
    D = 5
    G = 3
    NB = 7
    NH = 12
    NH0 = 10
    npre = 4
    dmarate = 2
    g2st = False
    yf_gap = 88
    yb_gap = 150
    l2pf = 56
    fa_tile = 7
    fa_pos = 10
    g2rot = False
    hb_poll = 40
    hb_check = 62
    align = 4
    htest = False
    hstp = 'sc1'
    drain = False
    wsbase = 0x8000000
    cvcut = ''
    prelater = 40
    csbar = 32 * 7 + 10
    hcheck = 108
    g1cut = ''
    NH00 = 10
    yflag = 40
    xs = ()
    cvst = False
    warm = True
    ylead = 28
    ywr = 194
    g1st = ()
    sst = True
    ppoll = 32 * 7 - 8
    pcheck = 32 * 7 + 24
    g2cut = ''
    hld = 'sc1'
    hflag_gap = 30
    hpoll_gap = 60
    hpoll2_gap = 84
    spoll = 32 * 4 + 6


def gen(opt):
    stamps = []
    SP = [26, 28]

    def raw(text):
        it = I(text)
        it.src = set()
        it.dst = set()
        return it

    state = {'G': [None, 0], 'S': [None, 0]}

    def stamp(st, name, path='G'):
        if not opt.stamps:
            return
        if name not in stamps:
            stamps.append(name)
        idx = stamps.index(name)
        if idx == 0:
            st.add([raw(f'{opt.clk} s[98:99]')])
            state['G'] = [(78, 0), 0]
            state['S'] = [(78, 0), 0]
            return
        (preg, pidx), par = state[path]
        st.add([raw(f'v_writelane_b32 v2, s{preg}, {pidx}'), raw(f'{opt.clk} s[{SP[par]}:{SP[par] + 1}]')])
        state[path] = [(SP[par], idx), par ^ 1]

    def xst(name):
        st_ = Stream()
        if name in opt.xs:
            stamp(st_, name)
        return st_.l

    def L(text, tag=None):
        s = Stream()
        s(text, tag)
        return s.l

    def each(items):
        out = []
        for x in items:
            if out and (x.op.startswith('s_cselect') or x.op in ('s_addc_u32', 's_subb_u32')):
                out[-1].append(x)
            else:
                out.append([x])
        return out

    def mk_srd(r, p, size):
        return L(f's_mov_b32 s{r}, s{p}\ns_mov_b32 s{r + 1}, s{p + 1}\ns_mov_b32 s{r + 2}, {size}\ns_mov_b32 s{r + 3}, 0x20000')

    def untracked(items):
        for it in items:
            if it.kind == 'vmem':
                it.kind = 'vmem_untracked'
        return items

    def set_flag(addr_sreg, label=None, off=0):
        s = Stream()
        if label:
            s(f's_cmp_lg_u32 s{sW}, 0\ns_cbranch_scc1 {label}')
        s(f'''
        v_mov_b32 v10, s{addr_sreg}
        v_mov_b32 v11, s{sTAG}
        s_mov_b64 exec, 1
        buffer_store_dword v11, v10, {srd(SRD_WS)}, 0 offen offset:{off} sc1
        s_mov_b64 exec, -1
        ''')
        if label:
            s(f'{label}:')
            return untracked(s.l)
        return s.l

    def poll_issue(vaddr, vdst, tag=None):
        return L(f'buffer_load_dword v{vdst}, v{vaddr}, {srd(SRD_WS)}, 0 offen sc1', tag)

    def wave0_addr(v):
        return L(f's_cmp_eq_u32 s{sW}, 0\ns_cselect_b32 s{sT0}, 0, 0x80000000\nv_or_b32 v{v}, s{sT0}, v{v}')

    def poll_check(vaddr, vdst, name, wave0=False):
        e = Stream()
        if wave0:
            e.wait(name)
            e(f's_cmp_lg_u32 s{sW}, 0\ns_cbranch_scc1 L_{name}_ok')
        e(f'''
        v_cmp_ne_u32 vcc, s{sTAG}, v{vdst}
        s_cbranch_vccz L_{name}_ok
        s_mov_b32 s{sSPIN}, 0
L_{name}_spin:
        s_sleep 1
        ''')
        e.add(untracked(poll_issue(vaddr, vdst)))
        w = L('s_waitcnt vmcnt(0)')
        w[0].op = 's_waitcnt_untracked'
        e.add(w)
        e(f'''
        v_cmp_ne_u32 vcc, s{sTAG}, v{vdst}
        s_add_u32 s{sSPIN}, s{sSPIN}, 1
        s_cmp_ge_u32 s{sSPIN}, 0x40000
        s_cbranch_scc1 L_{name}_ok
        s_cbranch_vccnz L_{name}_spin
L_{name}_ok:
        ''')
        return e.l

    P0 = Stream()
    e = P0
    e('s_cmp_ge_u32 s2, 256\ns_cbranch_scc1 L_end')
    stamp(e, 'start')
    e(f'''
    s_load_dwordx16 s[8:23], s[0:1], 0
    s_load_dwordx8 s[24:31], s[0:1], 64
    s_load_dwordx2 s[32:33], s[0:1], 96
    v_lshrrev_b32 v2, 6, v0
    v_and_b32 v1, 63, v0
    s_and_b32 s{sXCD}, s2, 7
    v_readfirstlane_b32 s{sW}, v2
    s_lshr_b32 s{sJ}, s2, 3
    v_lshrrev_b32 v3, 4, v1
    v_and_b32 v4, 15, v1
    v_lshrrev_b32 v5, 3, v1
    v_and_b32 v6, 7, v1
    v_lshrrev_b32 v7, 2, v4
    v_and_b32 v8, 3, v1
    v_lshlrev_b32 v122, 4, v1
    v_mov_b32 v16, 0
    s_lshr_b32 s{sT0}, s{sXCD}, 1
    s_and_b32 s{sT1}, s{sXCD}, 1
    s_and_b32 s{sT2}, s{sJ}, 3
    s_lshr_b32 s{sDB}, s{sJ}, 2
    s_lshl_b32 s{sB}, s{sT0}, 2
    s_add_u32 s{sB}, s{sB}, s{sT2}
    s_mul_i32 s{sA}, s{sT1}, 7
    s_add_u32 s{sA}, s{sA}, s{sDB}
    s_lshl_b32 s{sHB}, s2, 3
    s_lshl_b32 s{sT0}, s{sXCD}, 8
    s_lshl_b32 s{sT1}, s{sJ}, 3
    s_add_u32 s{sT0}, s{sT0}, s{sT1}
    s_lshl_b32 s{sT1}, s{sW}, 1
    s_add_u32 s{sHB}, s{sT0}, s{sT1}
    s_lshl_b32 s{sT4}, s{sHB}, 10
    ''')
    e(f'''
    s_add_u32 s{sROT}, s{sT2}, s{sDB}
    s_and_b32 s{sROT}, s{sROT}, 3
    s_and_b32 s{sT1}, s{sXCD}, 4
    ''')
    if opt.order == 'xor4':
        e(f's_add_u32 s{sROT}, s{sROT}, s{sT1}')
    elif opt.order in ('rot', 'xor8'):
        e(f's_lshl_b32 s{sROT}, s{sROT}, 1\ns_lshr_b32 s{sT1}, s{sT1}, 2\ns_add_u32 s{sROT}, s{sROT}, s{sT1}')
    elif opt.order == 'xr2':
        e(f's_and_b32 s{sROT}, s{sROT}, 1\ns_and_b32 s{sT1}, s{sXCD}, 6\ns_add_u32 s{sROT}, s{sROT}, s{sT1}')
    elif opt.order == 'xr1':
        e(f's_and_b32 s{sROT}, s{sXCD}, 6')
    elif opt.order == 'x2':
        e(f's_and_b32 s{sROT}, s{sROT}, 1')
    elif opt.order == 'none':
        e(f's_mov_b32 s{sROT}, 0')
    elif opt.order == 'xor2':
        e(f's_and_b32 s{sROT}, s{sROT}, 1\ns_add_u32 s{sROT}, s{sROT}, s{sT1}')
    e('s_waitcnt lgkmcnt(0)')
    if opt.stamps:
        e('s_mov_b32 s78, s98')
    e.add(mk_srd(SRD_X, 8, 0x200000))
    e(f'buffer_load_dwordx4 v[20:23], v122, {srd(SRD_X)}, s{sT4} offen')
    e(f'buffer_load_dwordx4 v[24:27], v122, {srd(SRD_X)}, s{sT4} offen offset:1024')
    e(f's_add_u32 s{SRD_WS}, s32, {opt.wsbase}\ns_addc_u32 s{SRD_WS + 1}, s33, 0\ns_mov_b32 s{SRD_WS + 2}, {WSSIZE}\ns_mov_b32 s{SRD_WS + 3}, 0x20000')
    e(f'buffer_load_dword v17, v16, {srd(SRD_WS)}, 0 offen sc1')
    e(f's_cmp_ge_u32 s{sJ}, 28\ns_cbranch_scc1 L_srole')

    def conv_scalar_loads():
        return L(f'''
        s_lshl_b32 s{sC0}, s{sXCD}, 6
        s_lshl_b32 s{sT0}, s{sJ}, 1
        s_add_u32 s{sC0}, s{sC0}, s{sT0}
        s_lshr_b32 s{sT0}, s{sW}, 1
        s_add_u32 s{sC0}, s{sC0}, s{sT0}
        s_lshl_b32 s{sT1}, s{sC0}, 12
        s_load_dwordx2 s[{sHD2}:{sHD2 + 1}], s[16:17], s{sT1}
        s_lshr_b32 s{sT0}, s{sC0}, 1
        s_lshl_b32 s{sT0}, s{sT0}, 2
        s_load_dword s{sDV2}, s[18:19], s{sT0}
        ''')

    def late_scalars():
        e = Stream()
        e.add(mk_srd(SRD_SSM, 16, 0x200000))
        e.add(mk_srd(SRD_DN, 26, 1792 * 1024))
        e.add(mk_srd(SRD_OUT, 28, 0x200000))
        e(f'''
        s_lshl_b32 s{sRB2}, s{sXCD}, 2
        s_and_b32 s{sT1}, s{sJ}, 3
        s_add_u32 s{sRB2}, s{sRB2}, s{sT1}
        s_lshr_b32 s{sT0}, s{sW}, 1
        s_mul_i32 s{sCVB}, s{sT0}, {CVCH}
        s_add_u32 s{sCVB}, s{sCVB}, {CV}
        s_mul_i32 s{sWDB}, s{sW}, 12288
        s_lshl_b32 s{sWDA}, s{sW}, 14
        s_add_u32 s{sWDA}, s{sWDA}, {WD_A}
        s_lshl_b32 s{sT1}, s{sT1}, {11 if opt.g2rot else 16}
        s_and_b32 s{sT1}, s{sT1}, 0x1800
        s_and_b32 s{sT2}, s{sT1}, 2048
        s_cmp_ge_u32 s{sDB}, {4 if opt.g2rot else 8}
        s_cselect_b32 s{sT0}, s{sT2}, s{sT1}
        s_cselect_b32 s{sT4}, s{sT1}, s{sT2}
        ''')
        for i in range(14):
            e(f's_cselect_b32 s{sSTEP + i}, {(i + 7) % 14}, {i}')
        for i in range(14):
            m = sT0 if i in (5, 6) else (sT4 if i in (12, 13) else sT1)
            e(f's_lshl_b32 s{sSTEP + i}, s{sSTEP + i}, 11\ns_xor_b32 s{sSTEP + i}, s{sSTEP + i}, s{m}')
        e(f'''
        s_lshl_b32 s{sT1}, s{sC0}, 12
        s_and_b32 s{sT2}, s{sW}, 1
        s_lshl_b32 s{sT2}, s{sT2}, 11
        s_add_u32 s{sYS}, s{sT2}, s{sT1}
        ''')
        return e.l

    def tail_scalars():
        e = Stream()
        e(f'''
        s_mul_i32 s{sHL}, s{sRB2}, {2 * 112 * 1024}
        s_mul_i32 s{sT1}, s{sW}, {28 * 1024}
        s_add_u32 s{sHL}, s{sHL}, s{sT1}
        s_add_u32 s{sHL}, s{sHL}, {HH}
        ''')
        e(f's_and_b32 s{sT2}, s{sDB}, {1 if opt.g2rot else 0}')
        for rho in range(4):
            e(f'''
            s_xor_b32 s{sT1}, s{sT2}, {rho}
            s_lshl_b32 s{sRW[rho]}, s{sT1}, 4
            ''')
        e(f's_lshl_b32 s{sT2}, s{sT2}, 8\ns_add_u32 s{sHL}, s{sHL}, s{sT2}')
        e(f'''
        s_lshl_b32 s{sXO}, s{sRB2}, 16
        s_lshl_b32 s{sT1}, s{sDB}, 7
        s_add_u32 s{sXO}, s{sXO}, s{sT1}
        s_lshl_b32 s{sT1}, s{sW}, 14
        s_add_u32 s{sXB}, s{sXO}, s{sT1}
        s_lshl_b32 s{sT1}, s{sW}, 5
        s_add_u32 s{sXO}, s{sXO}, s{sT1}
        s_lshl_b32 s{sSTB}, s{sRB2}, 9
        s_add_u32 s{sSTB}, s{sSTB}, {STATS}
        s_lshl_b32 s{sRDW}, s{sW}, 10
        s_add_u32 s{sRDW}, s{sRDW}, {RED}
        s_lshl_b32 s{sRDR}, s{sW}, 12
        s_add_u32 s{sRDR}, s{sRDR}, {RED}
        s_xor_b32 s{sEXR}, s{sW}, 1
        s_lshl_b32 s{sEXR}, s{sEXR}, 14
        s_add_u32 s{sEXR}, s{sEXR}, {WD_A}
        s_lshl_b32 s{sFY}, s{sDB}, {FS + 7}
        s_add_u32 s{sFY}, s{sFY}, {FLAG_Y}
        s_lshl_b32 s{sFH}, s{sRB2}, {FS + 6}
        s_add_u32 s{sFH}, s{sFH}, {FLAG_H}
        s_lshl_b32 s{sFP}, s{sXCD}, {FS + 2}
        s_add_u32 s{sFP}, s{sFP}, {FLAG_P}
        s_lshl_b32 s{sT0}, s{sDB}, 6
        s_lshl_b32 s{sT1}, s{sW}, 4
        s_add_u32 s{sT0}, s{sT0}, s{sT1}
        s_lshl_b32 s{sT0}, s{sT0}, 12
        s_lshl_b32 s{sT1}, s{sRB2}, 7
        s_add_u32 s{sT0}, s{sT0}, s{sT1}
        s_add_u32 s{sYG}, s{sT0}, {YT}
        s_mul_i32 s{sYSB}, s{sW}, 2560
        s_add_u32 s{sYSB}, s{sYSB}, {YS}
        s_lshl_b32 s{sT0}, s{sDV2}, 16
        s_and_b32 s{sT1}, s{sDV2}, 0xffff0000
        s_bitcmp1_b32 s{sC0}, 0
        s_cselect_b32 s{sDV}, s{sT1}, s{sT0}
        ''')
        e(f'''
        s_lshl_b32 s{sOWNY}, s{sXCD}, 5
        s_add_u32 s{sOWNY}, s{sOWNY}, s{sJ}
        s_lshl_b32 s{sOWNY}, s{sOWNY}, 2
        s_add_u32 s{sOWNY}, s{sOWNY}, s{sW}
        s_lshl_b32 s{sOWNY}, s{sOWNY}, {FS}
        s_add_u32 s{sOWNY}, s{sOWNY}, {FLAG_Y}
        ''')
        return e.l

    def code_prefetch(lab):
        return L(f'''
        s_getpc_b64 s[34:35]
{lab}:
        s_sub_u32 s34, s34, {lab}-{NAME}_kernel
        s_subb_u32 s35, s35, 0
        s_lshl_b32 s{sT0}, s{sJ}, 2
        s_add_u32 s{sT0}, s{sT0}, s{sW}
        s_mul_i32 s{sT0}, s{sT0}, 384
        v_min_u32 v18, 2, v1
        v_lshl_add_u32 v18, v18, 7, s{sT0}
        v_min_u32 v18, L_codeend-{NAME}_kernel-4, v18
        global_load_dword v18, v18, s[34:35]
        ''')

    def row_stats():
        e = Stream()
        e('v_mov_b32 v12, 0x3f803f80')
        for k in range(4):
            for r in range(2):
                b = 20 + 4 * r + k
                e(f'v_dot2_f32_bf16 v{28 + r}, v{b}, v12, {"0" if k == 0 else f"v{28 + r}"}')
                e(f'v_dot2_f32_bf16 v{30 + r}, v{b}, v{b}, {"0" if k == 0 else f"v{30 + r}"}')
        e(f'''
        v_readfirstlane_b32 s{sTAG}, v17
        v_lshrrev_b32 v13, 5, v1
        v_add_u32 v13, s{sHB}, v13
        v_permlane32_swap_b32 v28, v29
        v_permlane32_swap_b32 v30, v31
        s_add_u32 s{sTAG}, s{sTAG}, 1
        v_add_f32 v28, v28, v29
        v_add_f32 v30, v30, v31
        v_lshlrev_b32 v13, 3, v13
        v_mov_b32 v29, v28
        v_mov_b32 v31, v30
        v_add_u32 v13, {STATS}, v13
        v_and_b32 v14, 31, v1
        v_permlane16_swap_b32 v28, v29
        v_permlane16_swap_b32 v30, v31
        v_cmp_eq_u32 vcc, 0, v14
        v_add_f32 v28, v28, v29
        v_add_f32 v30, v30, v31
        v_mov_b32 v14, 0x80000000
        v_cndmask_b32 v13, v14, v13, vcc
        ''')
        for sh in (8, 4, 2, 1):
            for r in (28, 30):
                e(f'v_add_f32_dpp v{r}, v{r}, v{r} row_ror:{sh} row_mask:0xf bank_mask:0xf')
        e(f'''
        v_mul_f32 v28, 0x3b000000, v28
        v_mul_f32 v30, 0x3b000000, v30
        v_fma_f32 v29, -v28, v28, v30
        v_max_f32 v29, 0, v29
        v_add_f32 v29, 0x3727c5ac, v29
        ''')
        e(f'buffer_store_dwordx2 v[28:29], v13, {srd(SRD_WS)}, 0 offen sc1', tag='sst')
        return e.l

    def own_flag_addr(dst, base, tmp):
        return L(f's_lshl_b32 s{dst}, s{sXCD}, {FS + 5}\ns_lshl_b32 s{tmp}, s{sJ}, {FS}\ns_add_u32 s{dst}, s{dst}, s{tmp}\ns_add_u32 s{dst}, s{dst}, {base}')

    def g2stat_flag_addr(vdst):
        return L(f'''
        s_lshl_b32 s{sT0}, s{sXCD}, {FS + 5}
        s_and_b32 s{sT1}, s{sJ}, 3
        s_lshl_b32 s{sT1}, s{sT1}, {FS + 3}
        s_add_u32 s{sT0}, s{sT0}, s{sT1}
        s_add_u32 s{sT0}, s{sT0}, {FLAG_T}
        v_lshl_add_u32 v{vdst}, v6, {FS}, s{sT0}
        ''')

    VWD = 72
    VWR = 76

    def wd_addr_setup():
        e = Stream()
        e(f'''
        v_lshrrev_b32 v92, 1, v6
        v_lshrrev_b32 v93, 1, v5
        v_and_b32 v93, 3, v93
        v_xor_b32 v92, v92, v93
        v_lshlrev_b32 v92, 5, v92
        v_and_b32 v93, 1, v6
        v_lshl_add_u32 v92, v93, 4, v92
        v_lshl_add_u32 v92, v5, 10, v92
        s_mul_i32 s{sT0}, s{sW}, {448 * 1024}
        s_lshl_b32 s{sT1}, s{sDB}, 7
        s_add_u32 s{sT0}, s{sT0}, s{sT1}
        v_add_u32 v{VWD}, s{sT0}, v92
        v_add_u32 v{VWD + 1}, {7168}, v{VWD}
        v_add_u32 v{VWD + 2}, {2 * 7168}, v{VWD}
        v_add_u32 v{VWD + 3}, {3 * 7168}, v{VWD}
        v_lshrrev_b32 v92, 1, v3
        v_lshlrev_b32 v92, 4, v92
        v_and_b32 v93, 1, v3
        v_lshl_add_u32 v92, v93, 2, v92
        v_add_u32 v92, v92, v7
        v_lshlrev_b32 v92, 7, v92
        v_lshl_add_u32 v92, v8, 3, v92
        v_lshrrev_b32 v94, 1, v7
        v_lshl_add_u32 v93, v93, 1, v94
        v_lshl_add_u32 v92, v93, 5, v92
        ''')
        for dt in range(4):
            e(f'v_xor_b32 v93, {dt << 5}, v92')
            e(f'v_add_u32 v{VWR + dt}, s{sWDA}, v93')
            e(f'v_add_u32 v{VWR + 4 + dt}, s{sWDB}, v93')
        return e.l

    def wd_buf(i):
        i = i % 7
        if i <= 2:
            return sWDA, VWR, i * 4096
        if i == 6:
            return sWDA, VWR, 3 * 4096
        return sWDB, VWR + 4, (i - 3) * 4096

    def wd_dma(i):
        sm, _, off = wd_buf(i)
        out = []
        for n in range(4):
            s = Stream()
            if n == 0:
                s(f's_add_u32 m0, s{sm}, {off}')
                s(f's_lshl_b32 s{sSO2}, s{sSTEP + i}, 4')
            s(f'buffer_load_dwordx4 v{VWD + n}, {srd(SRD_DN)}, s{sSO2} offen offset:{1024 * n} lds', tag=f'wd{i}')
            out.append(s.l)
        return out

    def wd_reads(i):
        _, vr, off = wd_buf(i)
        out = []
        for dt in range(4):
            for h in range(2):
                a = 16 * i + 4 * dt + 2 * h
                out.append(I(f'ds_read_b64_tr_b16 a[{a}:{a + 1}], v{vr + dt} offset:{off + 1024 * h}', tag=f'wr{i}'))
        return out

    def cv_loads():
        e = Stream()
        for c in range(2):
            e(f'buffer_load_dwordx4 v[{32 + 8 * c}:{35 + 8 * c}], v122, {srd(SRD_SSM)}, s{sYS} offen offset:{1024 * c}')
            e(f'buffer_load_dwordx4 v[{36 + 8 * c}:{39 + 8 * c}], v122, {srd(SRD_SSM)}, s{sYS} offen offset:{1024 * c + 8}')
        return e.l

    def cv_prep():
        e = Stream()
        e(f'''
        s_and_b32 s{sT2}, s{sW}, 1
        s_lshl_b32 s{sT1}, s{sT2}, 11
        s_add_u32 s{sT1}, s{sT1}, s{sCVB}
        v_add_u32 v92, s{sT1}, v122
        v_mul_u32_u24 v93, 4160, v3
        v_lshl_add_u32 v93, v4, 1, v93
        v_add_u32 v93, s{sCVB}, v93
        v_add_u32 v94, s{sCVB}, v122
        v_add_u32 v123, v4, v3
        v_subrev_u32 v123, 16, v123
        v_lshlrev_b32 v124, 4, v123
        v_lshrrev_b64 v[66:67], v124, s[{sHD2}:{sHD2 + 1}]
        v_cmp_gt_i32 vcc, 0, v123
        v_cndmask_b32 v66, v66, 0, vcc
        v_add_u32 v123, 1, v4
        v_and_b32 v124, 3, v123
        v_mul_u32_u24 v124, 4160, v124
        v_and_b32 v123, 28, v123
        v_lshl_add_u32 v124, v123, 1, v124
        v_lshl_add_u32 v124, v3, 4, v124
        s_lshl_b32 s{sT1}, s{sT2}, 8
        s_add_u32 s{sT1}, s{sT1}, s{sCVB}
        v_add_u32 v70, s{sT1}, v124
        v_lshlrev_b32 v124, 5, v4
        v_lshlrev_b32 v125, 4, v3
        v_sub_u32 v125, v125, v124
        s_add_u32 s{sT1}, s{sT1}, {CVR + 480}
        v_add_u32 v71, s{sT1}, v125
        v_lshlrev_b32 v125, 3, v3
        v_add_u32 v125, v125, v124
        s_lshl_b32 s{sT1}, s{sT2}, 11
        s_sub_u32 s{sT1}, s{sCVB}, s{sT1}
        s_add_u32 s{sT1}, s{sT1}, {CVR + 4088 - 1536}
        v_sub_u32 v69, s{sT1}, v125
        v_and_b32 v125, 1, v3
        v_lshl_add_u32 v124, v125, 9, v124
        v_lshrrev_b32 v125, 1, v3
        v_lshl_add_u32 v68, v125, 4, v124
        ''')
        return e.l

    def cv_align():
        e = Stream()
        for c in range(2):
            L0, L1 = 32 + 8 * c, 36 + 8 * c
            t1, t3 = 48 + 8 * c, 52 + 8 * c
            w = [L0, L0 + 1, L0 + 2, L0 + 3, L1 + 2, L1 + 3]
            for n in range(4):
                e(f'v_alignbit_b32 v{t1 + n}, v{w[n + 1]}, v{w[n]}, 16')
            for n in range(4):
                e(f'v_alignbit_b32 v{t3 + n}, v{w[n + 2]}, v{w[n + 1]}, 16')
            e(f'v_mov_b32 v{L1 + 3}, v{L1 + 2}\nv_mov_b32 v{L1 + 2}, v{L0 + 3}\nv_mov_b32 v{L1 + 1}, v{L0 + 2}\nv_mov_b32 v{L1}, v{L0 + 1}')
        e('v_mov_b32 v12, 0\nv_mov_b32 v13, 0\nv_mov_b32 v14, 0\nv_mov_b32 v15, 0')
        return e.l

    def cv_writes_h():
        e = Stream()
        e(f'ds_write_b128 v94, v[12:15] offset:{CVR + 4096}', tag='cvw')
        e(f'ds_write_b16 v93, v66', tag='cvw')
        for c in range(2):
            for sg_, r in ((0, 32 + 8 * c), (2, 36 + 8 * c), (1, 48 + 8 * c), (3, 52 + 8 * c)):
                e(f'ds_write_b128 v92, v[{r}:{r + 3}] offset:{sg_ * 4160 + 32 + 1024 * c}', tag='cvw')
        return e.l

    def cv_writes_u():
        e = Stream()
        e(f'ds_write_b128 v92, a[192:195] offset:{CVR}', tag='cvw')
        e(f'ds_write_b128 v92, a[196:199] offset:{CVR + 1024}', tag='cvw')
        return e.l

    XXP = [84, 86, 88, 90]
    STP = [104, 106, 108, 110]

    def st_loads():
        return [L(f's_lshl_b32 s{sT4}, s{sRW[rho]}, 3\nbuffer_load_dwordx2 v[{STP[rho]}:{STP[rho] + 1}], v123, {srd(SRD_WS)}, s{sT4} offen sc1') for rho in range(4)]

    def p_poll_setup():
        return L(f'v_lshl_add_u32 v126, v8, {FS}, s{sFP}') + poll_issue(126, 127)

    def u_loads(name):
        e = Stream()
        e.add(poll_check(126, 127, name))
        e(f's_add_u32 s{sT4}, s{sYS}, {UT}')
        e(f'buffer_load_dwordx4 a[192:195], v122, {srd(SRD_WS)}, s{sT4} offen sc1')
        e(f'buffer_load_dwordx4 a[196:199], v122, {srd(SRD_WS)}, s{sT4} offen offset:1024 sc1')
        e(f's_add_u32 s{sYS}, s{sYS}, {YT}')
        return e.l

    CA = 32
    FR = [128, 192]

    def cv_reads(mu):
        f = FR[mu & 1]
        out = []
        for k in range(8):
            out.append(I(f'ds_read_b64 v[{f + 4 * k}:{f + 4 * k + 1}], v70 offset:{512 * k + 64 * mu}'))
            out.append(I(f'ds_read_b64 v[{f + 4 * k + 2}:{f + 4 * k + 3}], v70 offset:{512 * k + 64 * mu + 8}'))
            out.append(I(f'ds_read_b128 v[{f + 32 + 4 * k}:{f + 32 + 4 * k + 3}], v71 offset:{3584 - 512 * k + 64 * mu}'))
        return out

    G1 = Stream()
    e = G1
    HALF = sJ if opt.order == 'xr2' else sXCD
    VXD = 84
    VWDM = 88
    VRW = [96, 100]
    VRX = [112, 116]
    e(f'''
    s_lshl_b32 s{sM0X}, s{sW}, 12
    s_add_u32 s{sM0X}, s{sM0X}, 32768
    s_lshl_b32 s{sT0}, s{sB}, 17
    s_lshl_b32 s{sT1}, s{sW}, 15
    s_add_u32 s{sT0}, s{sT0}, s{sT1}
    v_xor_b32 v92, v6, v3
    v_lshlrev_b32 v92, 4, v92
    v_lshl_add_u32 v92, v5, 10, v92
    v_add_u32 v{VXD}, s{sT0}, v92
    v_xor_b32 v93, 64, v{VXD}
    v_add_u32 v{VXD + 1}, {7168}, v93
    v_add_u32 v{VXD + 2}, {2 * 7168}, v{VXD}
    v_add_u32 v{VXD + 3}, {3 * 7168}, v93
    ''')
    wsetup = L(f'''
    s_and_b32 s{sT0}, s{sW}, 1
    s_cmp_eq_u32 s{sT0}, 0
    s_cselect_b32 s{SRD_W}, s22, s24
    s_cselect_b32 s{SRD_W + 1}, s23, s25
    s_mov_b32 s{SRD_W + 2}, {512 * 3584}
    s_mov_b32 s{SRD_W + 3}, 0x20000
    v_lshrrev_b32 v92, 1, v4
    v_xor_b32 v92, v92, v3
    s_lshl_b32 s{sT1}, s{sT0}, 2
    v_xor_b32 v92, s{sT1}, v92
    v_lshlrev_b32 v92, 5, v92
    v_and_b32 v93, 1, v1
    v_lshl_add_u32 v92, v93, 4, v92
    v_mul_u32_u24 v93, 3584, v3
    v_add_u32 v92, v92, v93
    s_lshr_b32 s{sT1}, s{sW}, 1
    s_mul_i32 s{sT2}, s{sT1}, {16 * 3584}
    s_lshl_b32 s{sT4}, s{sA}, 8
    s_add_u32 s{sT2}, s{sT2}, s{sT4}
    v_add_u32 v{VWDM}, s{sT2}, v92
    v_add_u32 v{VWDM + 1}, {13312}, v{VWDM}
    v_add_u32 v{VWDM + 2}, {2 * 13312}, v{VWDM}
    v_add_u32 v{VWDM + 3}, {3 * 13312}, v{VWDM}
    s_lshl_b32 s{sM0W}, s{sT0}, 14
    s_lshl_b32 s{sT1}, s{sT1}, 12
    s_add_u32 s{sM0W}, s{sM0W}, s{sT1}
    s_bfe_u32 s{sT0}, s{HALF}, 0x10001
    s_mul_i32 s{sH0}, s{sT0}, {32 * 3584}
    s_lshl_b32 s{sH1}, s{sH0}, 1
    s_sub_u32 s{sH1}, {32 * 3584}, s{sH1}
    ''')

    def g1_dma(i):
        slot = SLOT[i % 3]
        out = []
        for n in range(12):
            s = Stream()
            if n == 0:
                if opt.order == 'rot':
                    s(f's_add_u32 s{sT3}, s{sROT}, {i}\ns_and_b32 s{sT3}, s{sT3}, 7')
                else:
                    s(f's_xor_b32 s{sT3}, s{sROT}, {i}')
                s(f's_add_u32 m0, s{sM0X}, {slot}' if slot else f's_mov_b32 m0, s{sM0X}')
                s(f's_lshl_b32 s{sSOX}, s{sT3}, 7')
            if n == 4:
                s(f's_add_u32 m0, s{sM0W}, {slot}' if slot else f's_mov_b32 m0, s{sM0W}')
                s(f's_mul_i32 s{sSOW}, s{sT3}, {64 * 3584}\ns_add_u32 s{sSOW}, s{sSOW}, s{sH0}')
            if n == 8:
                s(f's_add_u32 m0, s{sM0W}, {slot + 8192}')
                s(f's_add_u32 s{sSOW}, s{sSOW}, s{sH1}')
            tag = f'c{i}' if (i or n >= 8) else 'c0a'
            if n < 4:
                s(f'buffer_load_dwordx4 v{VXD + n}, {srd(SRD_X)}, s{sSOX} offen offset:{1024 * n} {opt.ld_x} lds', tag=tag)
            else:
                s(f'buffer_load_dwordx4 v{VWDM + (n & 3)}, {srd(SRD_W)}, s{sSOW} offen offset:{1024 * (n & 3)} {opt.ld_w} lds', tag=tag)
            out.append(s.l)
        return out

    d0 = g1_dma(0)
    for grp in d0[:4]:
        e.add(grp)
    e.add(wsetup)
    for grp in d0[4:8]:
        e.add(grp)
    e.add(code_prefetch('L_pcg'))
    e.add(conv_scalar_loads())
    e(f'''
    v_and_b32 v92, 1, v3
    v_lshrrev_b32 v93, 1, v3
    v_lshl_add_u32 v93, v93, 3, v7
    v_lshlrev_b32 v93, 8, v93
    v_lshl_add_u32 v93, v92, 14, v93
    v_lshl_add_u32 v93, v8, 3, v93
    v_lshlrev_b32 v92, 2, v92
    v_xor_b32 v92, v92, v7
    v_lshl_add_u32 v104, v92, 5, v93
    s_and_b32 s{sT0}, s{sW}, 2
    s_lshl_b32 s{sT0}, s{sT0}, 6
    v_xor_b32 v{VRW[0]}, s{sT0}, v104
    ''')
    for t in range(1, 4):
        e(f'v_xor_b32 v{VRW[0] + t}, {t << 5}, v{VRW[0]}')
    for t in range(4):
        e(f'v_add_u32 v{VRW[1] + t}, {SLOT[2]}, v{VRW[0] + t}')
    e(f'''
    v_and_b32 v92, 31, v1
    v_lshrrev_b32 v93, 1, v92
    v_and_b32 v93, 7, v93
    v_lshrrev_b32 v94, 5, v1
    v_xor_b32 v93, v93, v94
    v_lshlrev_b32 v93, 4, v93
    v_lshl_add_u32 v93, v92, 7, v93
    s_and_b32 s{sT0}, s{HALF}, 2
    s_lshl_b32 s{sT0}, s{sT0}, 5
    v_xor_b32 v93, s{sT0}, v93
    s_and_b32 s{sT0}, s{sW}, 1
    s_lshl_b32 s{sT0}, s{sT0}, 13
    s_add_u32 s{sT0}, s{sT0}, 32768
    v_add_u32 v{VRX[0]}, s{sT0}, v93
    ''')
    for ks in range(1, 4):
        e(f'v_xor_b32 v{VRX[0] + ks}, {ks << 5}, v{VRX[0]}')
    for ks in range(4):
        e(f'v_add_u32 v{VRX[1] + ks}, {SLOT[2]}, v{VRX[0] + ks}')
    CF = 160
    for t in range(4):
        e(f'v_accvgpr_write_b32 a{CF + 2 + 4 * t}, 0\nv_accvgpr_write_b32 a{CF + 3 + 4 * t}, 0')
    csum = L(f'''
    s_lshl_b32 s{sT0}, s{sW}, 6
    v_xor_b32 v105, s{sT0}, v104
    v_xor_b32 v106, 32, v105
    s_lshl_b32 s{sT1}, s{sA}, 4
    s_lshl_b32 s{sT2}, s{sROT}, 1
    s_add_u32 s{sT1}, s{sT1}, s{sT2}
    s_bfe_u32 s{sT2}, s{HALF}, 0x10001
    s_add_u32 s{sT1}, s{sT1}, s{sT2}
    s_lshl_b32 s{sT1}, s{sT1}, 10
    s_lshl_b32 s{sT0}, s{sW}, 8
    s_add_u32 s{sT1}, s{sT1}, s{sT0}
    s_add_u32 s{sT1}, s{sT1}, {CSP}
    v_lshl_add_u32 v107, v1, 2, s{sT1}
    ''')
    e.add(csum)
    pre_later = late_scalars() + wd_addr_setup() + cv_prep()
    npl = opt.prelater
    gl = each(pre_later)
    for grp in gl[:npl]:
        e.add(grp)
    stamp(e, 'issued')
    e.add(row_stats())
    stamp(e, 'stats')
    stream = [(g, -1) for g in d0[8:] + g1_dma(1) + g1_dma(2)]
    for c in range(3, 8):
        stream += [(g, 32 * (c - 2) - opt.D + 1) for g in g1_dma(c)]
    for grp, _ in stream[:4 + opt.npre]:
        e.add(grp)
    stream = stream[4 + opt.npre:]
    later = tail_scalars()
    s = L(f'''
    s_and_b32 s{sT0}, s{sXCD}, 6
    s_bfe_u32 s{sT1}, s{sJ}, 0x10001
    s_add_u32 s{sT0}, s{sT0}, s{sT1}
    s_lshl_b32 s{sT0}, s{sT0}, {FS + 5}
    s_and_b32 s{sT1}, s{sJ}, 1
    s_lshl_b32 s{sT1}, s{sT1}, {FS + 4}
    s_add_u32 s{sT0}, s{sT0}, s{sT1}
    s_add_u32 s{sT0}, s{sT0}, {FLAG_T}
    v_lshl_add_u32 v20, v4, {FS}, s{sT0}
    s_and_b32 s{sT2}, s{sXCD}, 1
    s_lshl_b32 s{sT2}, s{sT2}, {FS + 5}
    s_lshl_b32 s{sT1}, s{sDB}, {FS + 2}
    s_add_u32 s{sT1}, s{sT1}, s{sT2}
    s_add_u32 s{sT1}, s{sT1}, {FLAG_T}
    v_lshlrev_b32 v21, {FS + 6}, v7
    v_lshl_add_u32 v21, v8, {FS}, v21
    v_add_u32 v21, s{sT1}, v21
    v_cmp_gt_u32 vcc, 16, v1
    v_cndmask_b32 v20, v21, v20, vcc
    v_and_b32 v22, 31, v1
    v_lshlrev_b32 v23, 3, v22
    s_and_b32 s{sT1}, s{sW}, 2
    s_lshl_b32 s{sT1}, s{sT1}, 9
    s_add_u32 s{sT1}, s{sT1}, {CS2}
    v_add_u32 v23, s{sT1}, v23
    s_lshl_b32 s{sT0}, s{sB}, 10
    s_and_b32 s{sT1}, s{sW}, 1
    s_lshl_b32 s{sT1}, s{sT1}, 9
    s_add_u32 s{sT0}, s{sT0}, s{sT1}
    s_add_u32 s{sT0}, s{sT0}, {STATS}
    v_lshl_add_u32 v22, v22, 3, s{sT0}
    s_lshl_b32 s{sT0}, s{sW}, 10
    s_add_u32 s{sT0}, s{sT0}, {CS1}
    v_add_u32 v16, s{sT0}, v122
    v_lshlrev_b32 v17, 2, v0
    v_lshlrev_b32 v19, 1, v17
    v_add_u32 v17, {CS1}, v17
    v_add_u32 v19, {CS2}, v19
    s_lshl_b32 s{sT0}, s{sA}, 14
    s_lshl_b32 s{sT1}, s{sW}, 12
    s_add_u32 s{sT0}, s{sT0}, s{sT1}
    s_add_u32 s{sH0 + 2}, s{sT0}, {CSP}
    ''')
    s += g2stat_flag_addr(21) + L('v_cmp_gt_u32 vcc, 32, v1\nv_cndmask_b32 v20, v21, v20, vcc') + wave0_addr(20)
    later = s + later
    s = L(f'''
    s_lshl_b32 s{sT0}, s{sB}, 1
    s_and_b32 s{sT1}, s{sW}, 1
    s_add_u32 s{sT0}, s{sT0}, s{sT1}
    s_lshl_b32 s{sT1}, s{sA}, 1
    s_lshr_b32 s{sT2}, s{sW}, 1
    s_add_u32 s{sT1}, s{sT1}, s{sT2}
    s_mul_i32 s{sT2}, s{sT0}, 224
    s_lshl_b32 s{sHB}, s{sT0}, 6
    s_add_u32 s{sHB}, s{sHB}, s{sT1}
    s_lshl_b32 s{sHB}, s{sHB}, {FS}
    s_add_u32 s{sHB}, s{sHB}, {FLAG_H}
    s_lshl_b32 s{sT1}, s{sT1}, 2
    s_add_u32 s{sT2}, s{sT2}, s{sT1}
    s_lshl_b32 s{sT2}, s{sT2}, 10
    s_add_u32 s{sHST}, s{sT2}, {HH}
    ''')
    later += s
    cs_rd = []
    for i_ in range(2):
        for k in range(4):
            cs_rd += L(f'ds_read_b64_tr_b16 v[{32 + 8 * i_ + 2 * k}:{33 + 8 * i_ + 2 * k}], v{105 + i_} offset:{(k >> 1) * 4096 + (k & 1) * 1024}')
    cs_m = []
    for k in range(8):
        for i_ in range(2):
            cs_m += L(f'v_dot2_f32_bf16 v{48 + i_}, v{32 + 8 * i_ + k}, v12, {"0" if k == 0 else f"v{48 + i_}"}')
    cs_m += L('v_permlane32_swap_b32 v48, v49\nv_add_f32 v48, v48, v49')
    cs_m += L(f'buffer_store_dword v48, v107, {srd(SRD_WS)}, 0 offen sc1', tag='sst')

    ACC = 128
    NB = opt.NB
    AF = 256 - 4 * NB - 24
    BF = 256 - 24
    assert AF >= 200
    mains = []
    reads = {}
    for i in range(8):
        slot = SLOT[i % 3]
        st = 1 if i % 3 == 2 else 0
        imm = 0 if st else slot
        rl = []
        for ks in range(4):
            bq = BF + 8 * ((4 * i + ks) % 3)
            m0_ = 32 * i + 8 * ks
            for tt in range(4):
                m = m0_ + 2 * tt
                aq = AF + 4 * ((m // 2) % NB)
                if tt == 0:
                    rl.append((I(f'ds_read_b128 a[{bq}:{bq + 3}], v{VRX[st] + ks} offset:{imm}', tag=f'r{i}'), m0_, 'B'))
                for h in range(2):
                    rl.append((I(f'ds_read_b64_tr_b16 a[{aq + 2 * h}:{aq + 2 * h + 1}], v{VRW[st] + tt} offset:{imm + ks * 4096 + h * 1024}', tag=f'r{i}'), m, 'A'))
                if tt == 0:
                    rl.append((I(f'ds_read_b128 a[{bq + 4}:{bq + 7}], v{VRX[st] + ks} offset:{imm + 4096}', tag=f'r{i}'), m0_ + 1, 'B'))
                for nt in range(2):
                    ac = ACC + 16 * (4 * nt + tt)
                    c = '0' if (i == 0 and ks == 0) else f'v[{ac}:{ac + 15}]'
                    mains.append(I(f'v_mfma_f32_32x32x16_bf16 v[{ac}:{ac + 15}], a[{aq}:{aq + 3}], a[{bq + 4 * nt}:{bq + 4 * nt + 3}], {c}'))
        reads[i] = rl
    gaps = {}
    D, G = opt.D, opt.G

    def put(g, items):
        gaps.setdefault(g, [])
        gaps[g].extend(items if isinstance(items, list) else [items])

    pre = Stream()
    pre.wait('c0a', 'LGKM0')
    pre('s_barrier')
    stamp(pre, 'slot0')
    put(-1, pre.l + cs_rd)
    put(16 - D, [WAIT('c0')] + L('s_barrier'))
    for i in range(8):
        lo = 32 * i - D
        hi = 32 * (i + 1) - D - G
        rl = reads[i]
        n = len(rl)
        for jx, (ins, m, kind) in enumerate(rl):
            g = max(-1, lo + (jx * (hi - lo + 1)) // n)
            if i == 0 and m >= 16:
                g = max(g, 16 - D)
            lim = (m - 2 * NB + 1) if kind == 'A' else ((m & ~7) - 24 + 7)
            g = max(g, lim)
            assert g < m, (i, jx, g, m)
            assert g <= 32 * (i + 1) - D - 1
            put(g, ins)
        if i < 7:
            g = 32 * (i + 1) - D
            gaps[g] = [WAIT(f'c{i + 1}', 'LGKM0')] + L('s_barrier') + gaps.get(g, [])
    put(-1, cs_m)
    g = 0
    for grp, lo in stream:
        g = max(g, lo)
        put(g, grp)
        g += opt.dmarate
    assert g <= 32 * 6 - D + 1, g
    put(64 - D + 1, own_flag_addr(sSPIN, FLAG_T, sSO2) + set_flag(sSPIN, 'L_tf'))
    spread(gaps, gl[npl:] + each(later), 28, 32 * 5 - D - 4)
    EX = [84, 88, 104, 108]
    spread(gaps, wd_dma(0) + wd_dma(1) + wd_dma(2), 32 * 6 - D + 7, 32 * 7 - D - 1)
    spread(gaps, wd_dma(3) + wd_dma(4) + wd_dma(5), 32 * 7 - D + 1, 32 * 8 - 1)
    spread(gaps, each(cv_loads()), 32 * 4 - D - 7, 32 * 4 - D - 1)
    put(32 * 5 - D - 1, poll_issue(20, 21, 'sf'))
    b5 = 32 * 6 - D
    s = L(f'buffer_load_dwordx2 v[26:27], v22, {srd(SRD_WS)}, 0 offen sc1\nbuffer_load_dwordx2 v[24:25], v22, {srd(SRD_WS)}, 0 offen offset:256 sc1')
    for i_ in range(4):
        s += L(f'buffer_load_dwordx4 v[{EX[i_]}:{EX[i_] + 3}], v122, {srd(SRD_WS)}, s{sH0 + 2} offen offset:{1024 * i_} sc1')
    gaps[b5] = poll_check(20, 21, 'sf', True) + gaps[b5][:2] + s[2:3] + gaps[b5][2:]
    for k_, x in enumerate(s[3:] + s[:2]):
        gaps[b5 + 1 + k_] = [x] + gaps.get(b5 + 1 + k_, [])
    spread(gaps, each(cv_align()), 32 * 5 - D + 2, 32 * 6 - D - 2)
    s = []
    for r in range(4):
        s += L(f'v_add_f32 v{EX[0] + r}, v{EX[0] + r}, v{EX[1] + r}\nv_add_f32 v{EX[2] + r}, v{EX[2] + r}, v{EX[3] + r}')
    for r in range(4):
        s += L(f'v_add_f32 v{EX[0] + r}, v{EX[0] + r}, v{EX[2] + r}')
    s += L(f'ds_write_b128 v16, v[{EX[0]}:{EX[0] + 3}]', 'cs1')
    bx = opt.csbar
    spread(gaps, each(s), bx - 12, bx - 4)
    gaps[bx] = [WAIT('cs1')] + L('s_barrier') + gaps.get(bx, [])
    s = []
    for sw in range(4):
        s += L(f'ds_read_b32 v{28 + sw}, v17 offset:{1024 * sw}')
    spread(gaps, each(s), bx, bx + 1)
    s = L('''
    v_add_f32 v28, v28, v29
    v_add_f32 v30, v30, v31
    v_add_f32 v28, v28, v30
    v_cvt_pk_bf16_f32 v30, v28, v28
    v_lshlrev_b32 v29, 16, v30
    v_sub_f32 v29, v28, v29
    v_cvt_pk_bf16_f32 v31, v29, v29
    ds_write_b64 v19, v[30:31]
    ''')
    spread(gaps, each(s), bx + 6, bx + 12)
    KC = [26, 24]
    BM = [108, 104]
    s = L(f'v_cmp_gt_u32 s[{sT1}:{sT2}], 32, v1')
    for nt in range(2):
        k, b = KC[nt], BM[nt]
        s += L(f'''
        v_sub_f32 v{b}, 0, v{k}
        v_rsq_f32 v{k}, v{k + 1}
        v_cvt_pk_bf16_f32 v{b + 1}, v{b}, v{b}
        v_mov_b32 v{b + 2}, 0
        v_lshlrev_b32 v{b + 1}, 16, v{b + 1}
        v_mul_f32 v{k}, 0xbfb8aa3b, v{k}
        v_sub_f32 v{b + 1}, v{b}, v{b + 1}
        v_mov_b32 v{b + 3}, 0
        v_cvt_pk_bf16_f32 v{b}, v{b}, v{b + 1}
        v_cndmask_b32 v{b}, 0, v{b}, s[{sT1}:{sT2}]
        v_mov_b32 v{b + 1}, v{b}
        ''')
    spread(gaps, each(s), bx - 3, 32 * 8 - 3)
    g = 32 * 8 - D
    gaps[g] = [WAIT('LGKM0')] + L('s_barrier') + gaps.get(g, [])
    spread(gaps, [I(f'ds_read_b64 a[{CF + 4 * t}:{CF + 4 * t + 1}], v23 offset:{256 * t}') for t in range(4)], g, g + 1)
    put(opt.ppoll, p_poll_setup())
    put(opt.pcheck, u_loads('pf'))
    if opt.g1st:
        for i in range(1, 8):
            if i in opt.g1st:
                st_ = Stream()
                stamp(st_, f'it{i}')
                put(32 * i - 1, st_.l)
    put(32 * 7, L(f's_add_u32 s{sSOW}, s{sHST}, {112 * 1024}'))
    if opt.g1cut:
        for g in list(gaps):
            if g < 0:
                continue
            keep = []
            for x in gaps[g]:
                if 'vm' in opt.g1cut and x.kind == 'vmem' and x.op.startswith('buffer_load'):
                    continue
                if 'wd' in opt.g1cut and x.kind == 'dma' and x.tag.startswith('wd'):
                    continue
                if x.kind == 'vmem' and x.op.startswith('buffer_load'):
                    if 'ssm' in opt.g1cut and srd(SRD_SSM) in x.text:
                        continue
                    if 'xs' in opt.g1cut and (('v', 120) in x.src or ('v', 123) in x.src):
                        continue
                    if 'st' in opt.g1cut and (('v', 22) in x.src or ('s', sH0 + 2) in x.src or ('v', 20) in x.src):
                        continue
                if 'st' in opt.g1cut and x.op.startswith('s_cbranch_vccz') and 'L_sf' in x.text:
                    x = I(x.text.replace('s_cbranch_vccz', 's_branch'))
                if 'vm' in opt.g1cut and x.op.startswith('s_cbranch_vccz'):
                    x = I(x.text.replace('s_cbranch_vccz', 's_branch'))
                keep.append(x)
            gaps[g] = keep
    e.add(weave(mains, gaps))
    for t in range(8):
        b = BM[t >> 2]
        e(f'v_mfma_f32_32x32x16_bf16 v[{ACC + 16 * t}:{ACC + 16 * t + 15}], a[{CF + 4 * (t & 3)}:{CF + 4 * (t & 3) + 3}], v[{b}:{b + 3}], v[{ACC + 16 * t}:{ACC + 16 * t + 15}]')
    stamp(e, 'G1loop')
    hw = cv_writes_h()
    for t in range(8):
        A = ACC + 16 * t
        ep = Stream()
        for p in range(4):
            ep(f'v_pk_mul_f32 v[{A + 8 + 2 * p}:{A + 9 + 2 * p}], v[{A + 2 * p}:{A + 2 * p + 1}], v[{A + 8 + 2 * p}:{A + 9 + 2 * p}]')
        for p in range(4):
            ep(f'v_pk_mul_f32 v[{A + 2 * p}:{A + 2 * p + 1}], v[{A + 2 * p}:{A + 2 * p + 1}], v[{KC[t >> 2]}:{KC[t >> 2] + 1}] op_sel_hi:[1,0]')
        for k in range(8):
            ep(f'v_exp_f32 v{A + k}, v{A + k}')
        for p in range(4):
            ep(f'v_pk_fma_f32 v[{A + 2 * p}:{A + 2 * p + 1}], v[{A + 2 * p}:{A + 2 * p + 1}], v[{KC[t >> 2]}:{KC[t >> 2] + 1}], v[{KC[t >> 2]}:{KC[t >> 2] + 1}] op_sel:[0,1,1] op_sel_hi:[1,1,1]')
        for k in range(8):
            ep(f'v_rcp_f32 v{A + k}, v{A + k}')
        for p in range(4):
            ep(f'v_pk_mul_f32 v[{A + 8 + 2 * p}:{A + 9 + 2 * p}], v[{A + 8 + 2 * p}:{A + 9 + 2 * p}], v[{A + 2 * p}:{A + 2 * p + 1}]')
        for p in range(4):
            ep(f'v_cvt_pk_bf16_f32 v{A + p}, v{A + 8 + 2 * p}, v{A + 9 + 2 * p}')
        ep(f'buffer_store_dwordx4 v[{A}:{A + 3}], v122, {srd(SRD_WS)}, s{sHST if t < 4 else sSOW} offen offset:{1024 * (t & 3)} {opt.hstp}', tag='hsa' if t < 4 else 'hst')
        g2 = {}
        st_ = ep.l.pop()
        if t:
            g2[3] = [pend]
        pend = st_
        if t < 4:
            spread(g2, hw[(10 * t) // 4:(10 * (t + 1)) // 4], 8, 30)
        if t == 5:
            spread(g2, cv_writes_u(), 8, 30)
        if t == opt.fa_tile:
            g2.setdefault(opt.fa_pos, []).extend([WAIT('hsa')] + set_flag(sHB))
        if t == 7:
            g2[-1] = xst('e6') + [WAIT('cvw')] + L('s_barrier') + xst('ebar')
            spread(g2, cv_reads(0), 0, 34)
            g2.setdefault(35, []).extend([pend] + [x for grp in wd_dma(6) for x in grp])
        e.add(weave(ep.l, g2))
        if t < 6:
            e.add(xst(f'e{t}'))
    stamp(e, 'G1epi')
    if opt.drain:
        e.wait('hst')
        stamp(e, 'drain')
        if opt.htest:
            e.add(set_flag(sHB))
            e(f'v_min_u32 v126, 27, v1\nv_lshl_add_u32 v126, v126, {FS}, s{sFH}')
            e.add(poll_issue(126, 127) + poll_check(126, 127, 'ht'))
            stamp(e, 'hseen')

    T = Stream()
    e = T
    e('L_tail:')
    mains = []
    for mu in range(4):
        f = FR[mu & 1]
        for nt in range(8):
            for mp in range(nt + 1):
                c = '0' if (mu == 0 and mp == 0) else f'v[{CA + 4 * nt}:{CA + 4 * nt + 3}]'
                mains.append(I(f'v_mfma_f32_16x16x32_bf16 v[{CA + 4 * nt}:{CA + 4 * nt + 3}], v[{f + 4 * mp}:{f + 4 * mp + 3}], v[{f + 32 + 4 * (nt - mp)}:{f + 32 + 4 * (nt - mp) + 3}], {c}'))
    gaps = {}
    for mu in range(3):
        spread(gaps, cv_reads(mu + 1), 36 * mu + 1, 36 * mu + 32)
    for i in range(7):
        g0 = 2 + 14 * i
        put(g0, WAIT(f'wd{i}'))
        spread(gaps, wd_reads(i), g0, g0 + 12)
        d = wd_dma(7 + i)
        d[0] = [WAIT(f'wr{i}')] + d[0]
        spread(gaps, d, g0 + 17, g0 + 29)
    put(opt.hflag_gap, [WAIT('hst')] + set_flag(sHB, off=32 << FS))
    put(120, WAIT('wd7'))
    spread(gaps, wd_reads(7), 120, 135)
    put(opt.hpoll_gap - 2, L(f'v_min_u32 v126, 27, v1\nv_lshl_add_u32 v126, v126, {FS}, s{sFH}'))
    put(opt.hpoll_gap, poll_issue(126, 66))
    put(opt.hpoll2_gap, poll_issue(126, 127))
    GA = [224, 32, 48, 32]
    XU, YY, XN, RT, OO, TT = 176, 96, 68, 192, 208, 240
    g2_setup = L(f'''
    v_lshrrev_b32 v9, 1, v3
    v_lshlrev_b32 v9, 10, v9
    v_and_b32 v92, 1, v3
    v_lshl_add_u32 v9, v92, 9, v9
    v_lshl_add_u32 v9, v4, 4, v9
    v_add_u32 v9, s{sHL}, v9
    v_xor_b32 v29, 256, v9
    v_add_u32 v94, {112 * 1024}, v9
    v_add_u32 v95, {112 * 1024}, v29
    v_add_u32 v92, s{sWDA}, v122
    v_add_u32 v93, s{sEXR}, v122
    v_add_u32 v124, s{sRDW}, v122
    v_add_u32 v125, s{sRDR}, v122
    v_and_b32 v121, 31, v1
    v_lshl_add_u32 v121, s{sW}, 5, v121
    v_lshl_add_u32 v121, v121, {FS}, s{sFY}
    v_lshlrev_b32 v120, 10, v4
    v_lshl_add_u32 v120, v3, 3, v120
    v_add_u32 v120, s{sXO}, v120
    v_xor_b32 v16, v6, v5
    v_lshlrev_b32 v16, 4, v16
    v_lshl_add_u32 v16, v5, 10, v16
    v_add_u32 v17, 7168, v16
    v_lshrrev_b32 v18, 1, v3
    v_lshl_add_u32 v18, s{sW}, 1, v18
    v_xor_b32 v18, v18, v6
    v_lshlrev_b32 v18, 4, v18
    v_lshl_add_u32 v18, v4, 7, v18
    v_and_b32 v19, 1, v3
    v_lshl_add_u32 v18, v19, 3, v18
    v_add_u32 v18, {XS}, v18
    v_lshlrev_b32 v28, 12, v5
    v_lshl_add_u32 v28, v6, 4, v28
    v_mul_u32_u24 v30, 160, v5
    v_lshl_add_u32 v30, v6, 4, v30
    v_add_u32 v30, s{sYSB}, v30
    v_lshl_add_u32 v31, v3, 2, v7
    v_mul_u32_u24 v31, 160, v31
    v_lshl_add_u32 v31, v8, 3, v31
    v_add_u32 v31, s{sYSB}, v31
    v_mov_b32 v67, s{sDV}
    ''')
    HR = 128
    NH = opt.NH

    def h_load(n):
        rho, i = divmod(n, 14)
        r = HR + 4 * (n % NH)
        return L(f'buffer_load_dwordx4 v[{r}:{r + 3}], v{[9, 29, 94, 95][rho]}, {srd(SRD_WS)}, s{sSTEP + i} offen {opt.hld}')
    put(44, L(f'v_lshl_add_u32 v123, v4, 3, s{sSTB}'))
    spread(gaps, st_loads(), 46, 80)
    spread(gaps, each(g2_setup[:9]), 84, 100)
    spread(gaps, each(g2_setup[9:]), 108, 143)
    if opt.cvst:
        for z in (36, 72, 108):
            st_ = Stream()
            stamp(st_, f'cv{z}')
            put(z - 1, st_.l)
    chk = poll_check(126, 127, 'hf')
    w_ = I('s_waitcnt vmcnt(0)')
    w_.op = 's_waitcnt_untracked'
    chk[0].src = chk[0].src - {('v', 127)}
    st_ = Stream()
    stamp(st_, 'hflag')
    put(opt.hcheck, L(f'v_cmp_ne_u32 vcc, s{sTAG}, v66\ns_cbranch_vccz L_hf_ok') + [w_] + chk + st_.l)
    spread(gaps, [h_load(n) for n in range(opt.NH00)], opt.hcheck + 1, 143)
    put(143, L(f'v_add_u32 v126, {32 << FS}, v126') + poll_issue(126, 66))
    if opt.cvcut:
        for g in list(gaps):
            keep = []
            for x in gaps[g]:
                if 'dma' in opt.cvcut and x.kind == 'dma':
                    continue
                if 'st' in opt.cvcut and x.kind == 'vmem' and ('v', 123) in x.src:
                    continue
                if 'hst' in opt.cvcut and x.kind == 'wait' and 'hst' in x.wait:
                    continue
                if 'wr' in opt.cvcut and x.kind == 'lds' and x.tag and x.tag.startswith('wr'):
                    continue
                keep.append(x)
            gaps[g] = keep
    e.add(weave(mains, gaps))
    stamp(e, 'cvmain')
    RX = 192
    ex1 = [I(f'ds_read_b64 v[{112 + 2 * k}:{113 + 2 * k}], v69 offset:{1536 - 512 * k}') for k in range(4)]
    ex2 = [WAIT('wr7')] + L(f's_bitcmp1_b32 s{sW}, 0\ns_cbranch_scc1 L_exb')
    ex2 += [I(f'ds_write_b128 v92, v[{CA + 16 + 4 * k}:{CA + 19 + 4 * k}] offset:{1024 * k}', tag='cx') for k in range(4)]
    ex2 += L('s_branch L_exj\nL_exb:')
    alt = [I(f'ds_write_b128 v92, v[{CA + 4 * k}:{CA + 3 + 4 * k}] offset:{1024 * k}') for k in range(4)]
    for x in alt:
        x.kind = 'lds_untracked'
    ex2 += alt + L('L_exj:')
    ex3 = [WAIT('cx')] + L('s_barrier') + xst('xbar')
    ex3 += [I(f'ds_read_b128 v[{RX + 4 * k}:{RX + 3 + 4 * k}], v93 offset:{1024 * k}', tag='cr') for k in range(4)]
    ex4 = L(f's_lshl_b32 s{sT0}, s{sW}, 11\ns_add_u32 m0, s{sT0}, {XS}')
    ex4 += L(f'buffer_load_dwordx4 v16, {srd(SRD_X)}, s{sXB} offen lds\nbuffer_load_dwordx4 v17, {srd(SRD_X)}, s{sXB} offen offset:1024 lds', tag='xd')
    ex5 = [WAIT('cr')] + L(f's_bitcmp1_b32 s{sW}, 0\ns_cbranch_scc1 L_adb')
    ex5 += [I(f'v_add_f32 v{CA + k}, v{CA + k}, v{RX + k}') for k in range(16)]
    ex5 += L('s_branch L_adj\nL_adb:')
    ex5 += [I(f'v_add_f32 v{CA + k}, v{CA + 16 + k}, v{RX + k}') for k in range(16)]
    ex5 += L('L_adj:')
    fin = Stream()
    for k in range(4):
        a = CA + 4 * k
        d0_, d1_ = 112 + 2 * k, 113 + 2 * k
        fin(f'''
        v_and_b32 v12, 0xffff0000, v{d1_}
        v_lshlrev_b32 v13, 16, v{d1_}
        v_and_b32 v14, 0xffff0000, v{d0_}
        v_lshlrev_b32 v15, 16, v{d0_}
        v_fmac_f32 v{a}, v67, v12
        v_fmac_f32 v{a + 1}, v67, v13
        v_fmac_f32 v{a + 2}, v67, v14
        v_fmac_f32 v{a + 3}, v67, v15
        v_cvt_pk_bf16_f32 v{96 + 2 * k}, v{a}, v{a + 1}
        v_cvt_pk_bf16_f32 v{97 + 2 * k}, v{a + 2}, v{a + 3}
        ''')
    for ip in range(2):
        b = 96 + 4 * ip
        fin(f'v_permlane16_swap_b32 v{b}, v{b + 2}')
        fin(f'v_permlane16_swap_b32 v{b + 1}, v{b + 3}')
    for ip in range(2):
        b = 96 + 4 * ip
        fin(f'buffer_store_dwordx4 v[{b}:{b + 3}], v68, {srd(SRD_WS)}, s{sYS} offen offset:{1024 * ip} sc1', tag='yst')
    mains = []
    for rho in range(4):
        for i in range(14):
            n = 14 * rho + i
            r = HR + 4 * (n % NH)
            for dt in range(4):
                a = GA[rho] + 4 * dt
                c = '0' if i == 0 else f'v[{a}:{a + 3}]'
                mains.append(I(f'v_mfma_f32_16x16x32_bf16 v[{a}:{a + 3}], a[{16 * i + 4 * dt}:{16 * i + 4 * dt + 3}], v[{r}:{r + 3}], {c}'))
    gaps = {}
    assert NH <= 12
    nxt = opt.NH00
    for step in range(56):
        k = 2 if nxt - step < NH - 1 else 1
        for z in range(k):
            if nxt < 56 and nxt - NH <= step:
                g_ = 4 * step + 1 + 2 * z if nxt - NH < step else 4 * step + 3
                assert nxt < 28 or g_ > opt.hb_check
                put(g_, h_load(nxt))
                nxt += 1
    for i in range(8, 14):
        g0 = 4 * (i - 8) + 4
        put(g0, WAIT(f'wd{i}'))
        spread(gaps, wd_reads(i), g0, g0 + 3)
    put(0, ex1[:2])
    put(1, ex1[2:])
    put(3, ex2)
    put(10, ex3)
    put(12, ex4)
    put(18, ex5)
    spread(gaps, each(fin.l), 26, 55)
    put(opt.hb_check, poll_check(126, 66, 'hb'))
    def red_write(rho):
        return [I(f'ds_write_b128 v124, v[{GA[rho] + 4 * dt}:{GA[rho] + 4 * dt + 3}] offset:{16384 * (rho & 1) + 4096 * dt}', tag=f'rw{rho}') for dt in range(4)]

    def red_read(rho):
        return [I(f'ds_read_b128 v[{RT + 4 * sw}:{RT + 4 * sw + 3}], v125 offset:{16384 * (rho & 1) + 1024 * sw}') for sw in range(4)]

    def red_sum(pk):
        b, o = RT, OO
        if pk:
            return L(f'''
            v_pk_add_f32 v[{b}:{b + 1}], v[{b}:{b + 1}], v[{b + 4}:{b + 5}]
            v_pk_add_f32 v[{b + 2}:{b + 3}], v[{b + 2}:{b + 3}], v[{b + 6}:{b + 7}]
            v_pk_add_f32 v[{b + 8}:{b + 9}], v[{b + 8}:{b + 9}], v[{b + 12}:{b + 13}]
            v_pk_add_f32 v[{b + 10}:{b + 11}], v[{b + 10}:{b + 11}], v[{b + 14}:{b + 15}]
            v_pk_add_f32 v[{o}:{o + 1}], v[{b}:{b + 1}], v[{b + 8}:{b + 9}]
            v_pk_add_f32 v[{o + 2}:{o + 3}], v[{b + 2}:{b + 3}], v[{b + 10}:{b + 11}]
            ''')
        s = []
        for r in range(4):
            s += L(f'v_add_f32 v{b + r}, v{b + r}, v{b + 4 + r}')
        for r in range(4):
            s += L(f'v_add_f32 v{b + 8 + r}, v{b + 8 + r}, v{b + 12 + r}')
        for r in range(4):
            s += L(f'v_add_f32 v{o + r}, v{b + r}, v{b + 8 + r}')
        return s

    def xn_prep(rho):
        xu, xn, x0, x1, mu_, cc = XU + 4 * rho, XN + 4 * rho, XXP[rho], XXP[rho] + 1, STP[rho], STP[rho] + 1
        s = L(f'''
        v_rsq_f32 v{cc}, v{cc}
        v_lshlrev_b32 v{xu}, 16, v{x0}
        v_and_b32 v{xu + 1}, 0xffff0000, v{x0}
        v_lshlrev_b32 v{xu + 2}, 16, v{x1}
        v_and_b32 v{xu + 3}, 0xffff0000, v{x1}
        ''')
        for r in range(4):
            s += L(f'v_sub_f32 v{xn + r}, v{xu + r}, v{mu_}')
        for r in range(4):
            s += L(f'v_mul_f32 v{xn + r}, v{xn + r}, v{cc}')
        return s

    def gpart(rho):
        xn = XN + 4 * rho
        s = []
        for r in range(4):
            s += L(f'v_mul_f32 v{TT + r}, 0xbfb8aa3b, v{OO + r}')
        for r in range(4):
            s += L(f'v_exp_f32 v{TT + r}, v{TT + r}')
        for r in range(4):
            s += L(f'v_mul_f32 v{xn + r}, v{xn + r}, v{OO + r}')
        for r in range(4):
            s += L(f'v_add_f32 v{TT + r}, 1.0, v{TT + r}')
        for r in range(4):
            s += L(f'v_rcp_f32 v{TT + r}, v{TT + r}')
        for r in range(4):
            s += L(f'v_mul_f32 v{xn + r}, v{xn + r}, v{TT + r}')
        return s

    def y_unpack(rho, t):
        y0, y1 = YY + 2 * rho, YY + 2 * rho + 1
        return L(f'''
        v_lshlrev_b32 v{t}, 16, v{y0}
        v_and_b32 v{t + 1}, 0xffff0000, v{y0}
        v_lshlrev_b32 v{t + 2}, 16, v{y1}
        v_and_b32 v{t + 3}, 0xffff0000, v{y1}
        ''')

    def late(rho, t):
        xu, xn = XU + 4 * rho, XN + 4 * rho
        s = []
        for r in range(4):
            s += L(f'v_fmac_f32 v{xu + r}, v{xn + r}, v{t + r}')
        s += L(f'''
        v_cvt_pk_bf16_f32 v{xu}, v{xu}, v{xu + 1}
        v_cvt_pk_bf16_f32 v{xu + 1}, v{xu + 2}, v{xu + 3}
        ''')
        st = L(f's_lshl_b32 s{sT0}, s{sRW[rho]}, 10\nbuffer_store_dwordx2 v[{xu}:{xu + 1}], v120, {srd(SRD_OUT)}, s{sT0} offen {opt.out_st}')
        return each(s) + [st]

    for rho in range(3):
        g = 56 * (rho + 1)
        spread(gaps, red_write(rho), g + 4, g + 7)
        if rho == 0:
            put(g + 11, [WAIT('rw0', 'xd')] + L('s_barrier'))
        else:
            put(g + 11, [WAIT(f'rw{rho}')] + L('s_barrier'))
        spread(gaps, red_read(rho), g + 12, g + 15)
        spread(gaps, each(red_sum(False) + (xn_prep(0) if rho == 0 else []) + gpart(rho)), g + 19, g + (55 if rho < 2 else 38))
    s = []
    for rho in range(4):
        s.append(L(f's_lshl_b32 s{sT2}, s{sRW[rho]}, 7\nv_add_u32 v19, s{sT2}, v18\nds_read_b64 v[{XXP[rho]}:{XXP[rho] + 1}], v19'))
    spread(gaps, s, 56 + 12, 56 + 15)
    spread(gaps, each(xn_prep(1)), 100, 111)
    spread(gaps, each(xn_prep(2) + xn_prep(3)), 112, 167)
    put(opt.yf_gap, [WAIT('yst')] + set_flag(sOWNY))
    yb = opt.yb_gap
    put(yb - opt.ylead, poll_issue(121, 127))
    put(yb, poll_check(121, 127, 'yf') + L(f'''
    s_barrier
    s_add_u32 s{sT1}, s{sYG}, 32768
    buffer_load_dwordx4 v[244:247], v28, {srd(SRD_WS)}, s{sYG} offen sc1
    buffer_load_dwordx4 v[248:251], v28, {srd(SRD_WS)}, s{sT1} offen sc1
    '''))
    s = []
    for rho in range(4):
        s.append(L(f's_lshl_b32 s{sT2}, s{sRW[rho]}, 1\nv_add_u32 v{252 + rho}, s{sT2}, v31'))
    spread(gaps, s, 168 - 6, 168 + 1)
    yw = opt.ywr
    put(yw, L('ds_write_b128 v30, v[244:247]', tag='ys'))
    put(yw + 1, L(f'ds_write_b128 v30, v[248:251] offset:{8 * 160}', tag='ys'))
    put(yw + 4, WAIT('ys'))
    spread(gaps, [I(f'ds_read_b64_tr_b16 v[{YY + 2 * rho}:{YY + 2 * rho + 1}], v{252 + rho}') for rho in range(4)], yw + 4, yw + 5)
    work = []
    for rho in range(3):
        work += each(y_unpack(rho, 244 + 4 * (rho & 1))) + late(rho, 244 + 4 * (rho & 1))
    work += each(y_unpack(3, 252))
    spread(gaps, work, max(yw + 9, 168 + 38), 168 + 55)
    for z in (3, 15, 27, 39):
        put(z, xst(f'g{z}'))
    if opt.g2cut:
        for g in list(gaps):
            if 'valu' in opt.g2cut:
                gaps[g] = [x for x in gaps[g] if not (x.kind == 'valu' and g > 60 and not x.op.startswith('v_cmp') and not (x.dst & {('v', 10), ('v', 11), ('v', 30), ('v', 31), ('v', 252), ('v', 253), ('v', 254), ('v', 255)}))]
            if 'load' in opt.g2cut:
                gaps[g] = [x for x in gaps[g] if not (x.kind == 'vmem' and ('v', 9) in x.src)]
            if 'poll' in opt.g2cut:
                gaps[g] = [x for x in gaps[g] if not x.op.startswith('s_cbranch_vccnz')]
    if opt.g2st:
        for rho in range(3):
            st_ = Stream()
            stamp(st_, f'rt{rho}')
            put(56 * (rho + 1) - 1, st_.l)
            if rho == 0:
                st_ = Stream()
                stamp(st_, 'ybar')
                put(56 + 12, st_.l)
    e.add(weave(mains, gaps))
    stamp(e, 'G2main')
    e.add(red_write(3))
    e.wait('rw3')
    e('s_barrier')
    e.add(red_read(3))
    e.add(red_sum(True))
    e.add(gpart(3))
    for grp in late(3, 252):
        e.add(grp)
    if opt.stamps:
        stamp(e, 'end')
        e('s_waitcnt lgkmcnt(0)')
        k = stamps.index('end')
        e.add([raw(f'v_writelane_b32 v2, s{state["G"][0][0]}, {k}')])
        e(f'''
        s_lshl_b32 s{sT0}, s2, 2
        s_add_u32 s{sT0}, s{sT0}, s{sW}
        s_lshl_b32 s{sT0}, s{sT0}, 6
        s_add_u32 s{sT0}, s{sT0}, {STAMP}
        v_lshl_add_u32 v10, v1, 2, s{sT0}
        s_mov_b64 exec, 0xffff
        buffer_store_dword v2, v10, {srd(SRD_WS)}, 0 offen
        ''')
        if opt.spin:
            a, b, m, wg = opt.spin
            e(f'''
            s_cmp_lg_u32 s2, {wg}
            s_cbranch_scc1 L_end
            s_cmp_lg_u32 s{sW}, 0
            s_cbranch_scc1 L_end
            s_nop 4
            v_readlane_b32 s{sT0}, v2, {stamps.index(a)}
            v_readlane_b32 s{sT1}, v2, {stamps.index(b)}
            v_readlane_b32 s{sT2}, v2, {k}
            s_nop 4
            s_sub_u32 s{sT0}, s{sT1}, s{sT0}
            s_mul_i32 s{sT0}, s{sT0}, {m}
            s_min_u32 s{sT0}, s{sT0}, 100000
            s_add_u32 s{sT0}, s{sT0}, s{sT2}
L_dspin:
            s_memrealtime s[26:27]
            s_waitcnt lgkmcnt(0)
            s_sub_u32 s{sT1}, s26, s{sT0}
            s_cmp_lt_i32 s{sT1}, 0
            s_cbranch_scc1 L_dspin
            ''')
    e('L_end:')
    e('s_endpgm')

    S = Stream()
    e = S
    e('L_srole:')
    e.add(mk_srd(SRD_K, 10, 0x200000))
    e.add(mk_srd(SRD_V, 12, 0x200000))
    e(f'''
    s_sub_u32 s{sA}, s{sJ}, 28
    v_lshrrev_b32 v9, 1, v6
    v_and_b32 v10, 1, v3
    v_lshlrev_b32 v10, 1, v10
    v_xor_b32 v9, v9, v10
    v_lshlrev_b32 v9, 5, v9
    v_and_b32 v10, 1, v6
    v_lshl_add_u32 v9, v10, 4, v9
    v_lshl_add_u32 v9, v5, 10, v9
    s_lshl_b32 s{sT0}, s{sXCD}, 7
    v_add_u32 v84, s{sT0}, v9
    s_lshl_b32 s{sT1}, s{sA}, 2
    s_add_u32 s{sT1}, s{sT1}, s{sW}
    s_lshl_b32 s{sSOX}, s{sT1}, 17
    s_sub_u32 s{sT4}, s{sSOX}, 8192
    s_cmp_eq_u32 s{sT1}, 0
    s_cselect_b32 s{sT4}, 0x80000000, s{sT4}
    v_add_u32 v86, s{sT4}, v84
    s_mul_i32 s{sM0X}, s{sW}, {SPW}
    s_mov_b32 m0, s{sM0X}
    s_mov_b32 s{sMASK}, 0xffff
    s_lshl_b32 s{sT1}, s{sXCD}, 9
    v_lshl_add_u32 v13, v1, 3, s{sT1}
    ''')
    e(f'buffer_load_dwordx4 v86, {srd(SRD_K)}, 0 offen {opt.ld_kv} lds', tag='kv0')
    e('global_load_dwordx2 v[96:97], v13, s[14:15]')

    def kv_dma(u):
        out = []
        for which in 'kv':
            for n in (2 * u, 2 * u + 1):
                off = 1024 * (n + 1) if which == 'k' else 17408 + 1024 * (n & 7)
                out.append(L(f's_add_u32 m0, s{sM0X}, {off}\ns_add_u32 s{sT3}, s{sSOX}, {8192 * n}') +
                           L(f'buffer_load_dwordx4 v84, {srd(SRD_K if which == "k" else SRD_V)}, s{sT3} offen {opt.ld_kv} lds', tag=f'kv{u}'))
        return out
    for grp in kv_dma(0) + kv_dma(1):
        e.add(grp)
    e.add(code_prefetch('L_pcs'))
    e.add(conv_scalar_loads())
    e.add(late_scalars())
    e(f'''
    v_lshlrev_b32 v104, 7, v7
    v_lshl_add_u32 v104, v8, 3, v104
    v_and_b32 v105, 2, v7
    v_xor_b32 v105, v105, v3
    v_lshl_add_u32 v104, v105, 5, v104
    v_add_u32 v104, s{sM0X}, v104
    s_add_u32 s{sT0}, s{sM0X}, {17408 + 8192}
    v_mul_u32_u24 v105, 144, v1
    v_add_u32 v105, s{sT0}, v105
    v_mul_u32_u24 v106, 144, v5
    v_lshl_add_u32 v106, v6, 4, v106
    v_add_u32 v106, s{sT0}, v106
    v_lshlrev_b32 v107, 12, v5
    v_lshl_add_u32 v107, v6, 4, v107
    s_lshl_b32 s{sT0}, s{sXCD}, 18
    s_lshr_b32 s{sT1}, s{sSOX}, 9
    s_sub_u32 s{sT0}, s{sT0}, s{sT1}
    s_add_u32 s{sB}, s{sT0}, {UT + 3968}
    s_lshl_b32 s{sT0}, s{sXCD}, 2
    s_add_u32 s{sT0}, s{sT0}, s{sA}
    s_lshl_b32 s{sT0}, s{sT0}, 2
    s_add_u32 s{sT0}, s{sT0}, s{sW}
    s_mul_i32 s{sT0}, s{sT0}, {14 * 1024}
    v_lshl_add_u32 v87, v1, 4, s{sT0}
    ''')
    stamp(e, 'issued', 'S')
    e.add(row_stats())
    stamp(e, 'stats', 'S')
    WP = 108
    e(f'''
    v_alignbit_b32 v{WP}, v96, v96, 16
    v_alignbit_b32 v{WP + 1}, v97, v97, 16
    v_and_b32 v{WP + 2}, 0xffff, v96
    v_bfi_b32 v{WP + 3}, s{sMASK}, v97, v96
    v_and_b32 v{WP + 4}, 0xffff0000, v97
    ''')
    for grp in kv_dma(2):
        e.add(grp)

    def p_reads(u):
        b = 128 + 20 * (u & 1)
        s = [WAIT(f'kv{u}')]
        for n in range(5):
            s += L(f'ds_read_b64_tr_b16 v[{b + 2 * n}:{b + 2 * n + 1}], v104 offset:{(4 + 16 * u + 4 * n) * 128}')
        for n in range(4):
            s += L(f'ds_read_b64_tr_b16 v[{b + 10 + 2 * n}:{b + 11 + 2 * n}], v104 offset:{17408 + ((16 * u) % 64 + 4 * n) * 128}', tag=f'pv{u}')
        return s

    def p_math(u):
        b = 128 + 20 * (u & 1)
        K = lambda n: f'v{b + 2 + n}'
        w = WP
        s = Stream()
        for n in range(8):
            s(f'v_dot2_f32_bf16 v{33 + 2 * n}, {K(n)}, v{w}, 0')
            s(f'v_dot2_f32_bf16 v{32 + 2 * n}, {K(n)}, v{w + 2}, 0')
        for n in range(8):
            s(f'v_dot2_f32_bf16 v{33 + 2 * n}, {K(n - 1)}, v{w + 1}, v{33 + 2 * n}')
            s(f'v_dot2_f32_bf16 v{32 + 2 * n}, {K(n - 1)}, v{w + 3}, v{32 + 2 * n}')
        for n in range(8):
            s(f'v_dot2_f32_bf16 v{32 + 2 * n}, {K(n - 2)}, v{w + 4}, v{32 + 2 * n}')
        for n in range(8):
            s(f'v_lshlrev_b32 v{48 + 2 * n}, 16, v{b + 10 + n}')
            s(f'v_and_b32 v{49 + 2 * n}, 0xffff0000, v{b + 10 + n}')
        for n in range(8):
            s(f'v_pk_mul_f32 v[{32 + 2 * n}:{33 + 2 * n}], v[{32 + 2 * n}:{33 + 2 * n}], v[{48 + 2 * n}:{49 + 2 * n}]')
        for m in range(8):
            n = 7 - m
            s(f'v_cvt_pk_bf16_f32 v{64 + m}, v{33 + 2 * n}, v{32 + 2 * n}')
        s(f'ds_write_b128 v105, v[64:67] offset:{96 - 32 * (u & 3)}', tag=f'po{u}')
        s(f'ds_write_b128 v105, v[68:71] offset:{112 - 32 * (u & 3)}', tag=f'po{u}')
        return s.l

    def p_out_read(th):
        return [WAIT(f'po{4 * th + 3}')] + [I(f'ds_read_b128 v[{168 + 4 * n}:{171 + 4 * n}], v106 offset:{8 * 144 * n}') for n in range(8)]

    def p_out_store(th):
        return [L(f's_add_u32 s{sT0}, s{sB}, {n * 32768 - 128 * th}') +
                L(f'buffer_store_dwordx4 v[{168 + 4 * n}:{171 + 4 * n}], v107, {srd(SRD_WS)}, s{sT0} offen sc1', tag='ust') for n in range(8)]

    warm = []
    for n in range(14):
        warm.append(L(f'buffer_load_dwordx4 v[{200 + 4 * n}:{203 + 4 * n}], v87, {srd(SRD_DN)}, 0 offen offset:{(n & 3) * 1024}') +
                    (L('v_add_u32 v87, 4096, v87') if (n & 3) == 3 else []))
    e.add(p_reads(0))
    for u in range(8):
        m = p_math(u)
        g = {}
        if u < 7:
            g[30] = p_reads(u + 1)
        if u + 3 < 8:
            d = kv_dma(u + 3)
            if u >= 1:
                d[2] = [WAIT(f'pv{u - 1}')] + d[2]
            spread(g, d, 0, 28)
        if u == 2:
            g.setdefault(-1, []).extend(L('s_barrier') + own_flag_addr(sT0, FLAG_T, sT1) + set_flag(sT0, 'L_stf'))
        if u == 4:
            g.setdefault(-1, []).extend(p_out_read(0))
            spread(g, p_out_store(0)[:4], 40, 70)
        if u == 5:
            spread(g, p_out_store(0)[4:], 0, 70)
        if u >= 6 and opt.warm:
            spread(g, warm[7 * (u - 6):7 * (u - 5)], 0, 70)
        e.add(weave(m, g))
        if u in (0, 1, 3, 5, 7) and opt.sst:
            stamp(e, f'Su{u}', 'S')
    e.add(p_out_read(1))
    for grp in p_out_store(1):
        e.add(grp)
    e.add(wd_addr_setup())
    e.add(tail_scalars())
    e.wait('ust')
    e('s_barrier')
    e(f's_lshl_b32 s{sT0}, s{sXCD}, 2\ns_add_u32 s{sT0}, s{sT0}, s{sA}\ns_lshl_b32 s{sT0}, s{sT0}, {FS}\ns_add_u32 s{sT0}, s{sT0}, {FLAG_P}')
    e.add(set_flag(sT0, 'L_spf'))
    stamp(e, 'slot0', 'S')
    if opt.l2pf:
        e(f'''
        s_mul_i32 s{sT0}, s{sA}, {448 * 1024}
        s_mul_i32 s{sT1}, s{sW}, {56 * 1024}
        s_add_u32 s{sT0}, s{sT0}, s{sT1}
        s_add_u32 s{sT0}, s{sT0}, {224 * 1024}
        ''')
        for n in range(opt.l2pf):
            r = 128 + 4 * (n % 24)
            e(f'buffer_load_dwordx4 v[{r}:{r + 3}], v122, {srd(SRD_DN)}, s{sT0} offen offset:{(n & 3) * 1024}')
            if (n & 3) == 3:
                e(f's_add_u32 s{sT0}, s{sT0}, 4096')
    e.add(cv_loads())
    e.add(p_poll_setup())
    for i in range(7):
        for grp in wd_dma(i):
            e.add(grp)
    e.add(cv_prep() + cv_align())
    e.add(g2stat_flag_addr(22) + poll_issue(22, 23) + poll_check(22, 23, 'sfs'))
    stamp(e, 'G1loop', 'S')
    e.add(u_loads('pfs'))
    e.add(cv_writes_h() + cv_writes_u())
    e(f'''
    s_cmp_lg_u32 s2, 224
    s_cbranch_scc1 L_noep
    s_cmp_lg_u32 s{sW}, 0
    s_cbranch_scc1 L_noep
    v_lshlrev_b32 v126, {FS}, v1
    v_add_u32 v126, {FLAG_T}, v126
    ''')
    for k in range(4):
        e.add(poll_issue(126, 127) + poll_check(126, 127, f'ep{k}'))
        e(f'v_add_u32 v126, {64 << FS}, v126')
    e(f's_mov_b32 s{sT0}, {EPOCH}')
    e.add(set_flag(sT0))
    e('L_noep:')
    e(f's_mov_b32 s{sHB}, 0x80000000')
    e('s_waitcnt vmcnt(0) lgkmcnt(0)')
    e('s_barrier')
    e.add(cv_reads(0))
    stamp(e, 'G1epi', 'S')
    if opt.drain:
        e('s_waitcnt lgkmcnt(0)')
        stamp(e, 'drain', 'S')
        if opt.htest:
            e('s_waitcnt lgkmcnt(0)')
            stamp(e, 'hseen', 'S')
    e('s_waitcnt vmcnt(0) lgkmcnt(0)')
    if opt.stamps:
        r = state['S'][0][0]
        e(f's_mov_b32 s{SP[0] + SP[1] - r}, s{r}')
    e('s_branch L_tail')

    def finish(lst):
        r = resolve_waits(lst)
        for it in r:
            if it.kind == 'vmem_untracked':
                it.kind = 'vmem'
            if it.kind == 'lds_untracked':
                it.kind = 'lds'
        return insert_nops(r)
    A, n1 = finish(P0.l + G1.l + T.l)
    mark = I('L_mark:')
    Bs, n2 = finish(P0.l + [mark] + S.l)
    Bs = Bs[Bs.index(mark) + 1:]
    allins = A + Bs
    if opt.align:
        pre_ = f'.amdgcn_target "amdgcn-amd-amdhsa--gfx950"\n.text\n{NAME}_kernel:\n'
        sizes = instr_sizes(pre_ + render(allins) + 'L_codeend:\n')
        allins, nw, nn = align_pass(allins, sizes, opt.align)
        n2 = (n2, nw, nn)
    body = render(allins) + 'L_codeend:\n'
    hdr = open(os.path.join(os.path.dirname(os.path.abspath(__file__)), 'header.txt')).read()
    if stamps:
        hdr = '; stamps: ' + ' '.join(stamps) + '\n' + hdr
    launch = '; @launch grid=(256,1,1) block=(256,1,1) lds=163840\n'
    txt = hdr + launch + f'''.amdgcn_target "amdgcn-amd-amdhsa--gfx950"
.text
.globl {NAME}_kernel
.p2align 8
.type {NAME}_kernel,@function
{NAME}_kernel:
''' + body + f'''.section .rodata,"a"
.p2align 6
.amdhsa_kernel {NAME}_kernel
  .amdhsa_next_free_vgpr 512
  .amdhsa_next_free_sgpr 102
  .amdhsa_accum_offset 256
  .amdhsa_group_segment_fixed_size 0
  .amdhsa_kernarg_size 104
  .amdhsa_user_sgpr_count 2
  .amdhsa_user_sgpr_kernarg_segment_ptr 1
  .amdhsa_system_sgpr_workgroup_id_x 1
.end_amdhsa_kernel
'''
    return txt, stamps, (len(A), len(Bs), n1, n2)


if __name__ == '__main__':
    opt = Opt()
    out = sys.argv[1] if len(sys.argv) > 1 else f'cdna_kernels/{NAME}.s'
    for a in sys.argv[2:]:
        k, v = a.split('=', 1)
        assert hasattr(opt, k), k
        setattr(opt, k, eval(v))
    txt, stamps, info = gen(opt)
    open(out, 'w').write(txt)
    print('wrote', out, 'instrs/nops', info, 'stamps', stamps)
```

```python
import re

REG_RE = re.compile(r'^(-?)(?:abs\()?([vas])(?:(\d+)|\[(\d+):(\d+)\])\)?$')


def regs_of(tok):
    tok = tok.strip()
    if tok == 'vcc':
        return {('s', 'vcc')}
    if tok == 'exec':
        return {('s', 'exec')}
    if tok == 'm0':
        return {('s', 'm0')}
    m = REG_RE.match(tok)
    if not m:
        return set()
    k = m.group(2)
    if m.group(3) is not None:
        return {(k, int(m.group(3)))}
    return {(k, i) for i in range(int(m.group(4)), int(m.group(5)) + 1)}


TRANS = ('v_exp_f32', 'v_log_f32', 'v_rcp_f32', 'v_rsq_f32', 'v_sqrt_f32', 'v_sin_f32', 'v_cos_f32')


class I:
    __slots__ = ('text', 'op', 'kind', 'dst', 'src', 'tag', 'wait', 'srcc', 'passes', 'wide', 'dpp', 'ops')

    def __init__(self, text, tag=None, wait=None):
        self.text = text
        self.tag = tag
        self.wait = wait
        self.dst = set()
        self.src = set()
        self.srcc = set()
        self.passes = 0
        self.wide = False
        self.dpp = False
        self.ops = []
        t = text.split(';')[0].strip()
        if wait is not None:
            self.op = 'WAIT'
            self.kind = 'wait'
            return
        if t.endswith(':') or t.startswith('.') or t == '':
            self.op = t
            self.kind = 'label' if t.endswith(':') else 'dir'
            return
        parts = t.split(None, 1)
        op = parts[0]
        self.op = op
        rest = parts[1] if len(parts) > 1 else ''
        toks = []
        cur = ''
        depth = 0
        for ch in rest:
            if ch in '[(':
                depth += 1
            if ch in '])':
                depth -= 1
            if ch == ',' and depth == 0:
                toks.append(cur.strip())
                cur = ''
            else:
                cur += ch
        if cur.strip():
            toks.append(cur.strip())
        mods = ''
        if toks:
            last = toks[-1].split()
            toks[-1] = last[0]
            mods = ' '.join(last[1:])
        self.ops = toks
        R = [regs_of(x) for x in toks]
        base = op.replace('_e32', '').replace('_e64', '').replace('_dpp', '').replace('_sdwa', '')
        if op.startswith('v_mfma'):
            self.kind = 'mfma'
            self.dst = R[0]
            self.src = R[1] | R[2] | R[3]
            self.srcc = R[3]
            self.passes = 8 if '32x32x16' in op else 4
        elif op.startswith('ds_read') or op.startswith('ds_bpermute') or op.startswith('ds_swizzle'):
            self.kind = 'lds'
            self.dst = R[0]
            self.src = set().union(*R[1:])
        elif op.startswith('ds_write'):
            self.kind = 'lds'
            self.src = set().union(*R)
        elif op.startswith('buffer_load') or op.startswith('global_load'):
            self.kind = 'vmem'
            if ' lds' in (' ' + mods) or 'load_lds' in op:
                self.src = set().union(*R) | {('s', 'm0')}
                self.kind = 'dma'
            else:
                self.dst = R[0]
                self.src = set().union(*R[1:])
        elif op.startswith('buffer_store') or op.startswith('global_store') or 'atomic' in op:
            self.kind = 'vmem'
            self.src = set().union(*R)
            self.wide = op.endswith('x4') or op.endswith('x3')
        elif op.startswith('s_load') or op.startswith('s_memtime') or op.startswith('s_memrealtime'):
            self.kind = 'smem'
            self.dst = R[0]
            self.src = set().union(*R[1:]) if len(R) > 1 else set()
        elif op in ('s_waitcnt', 's_nop', 's_barrier', 's_sleep', 's_setprio', 's_endpgm') or op.startswith('s_cbranch') or op == 's_branch':
            self.kind = 'sopp'
        elif op.startswith('s_'):
            self.kind = 'salu'
            if op.startswith('s_cmp') or op.startswith('s_bitcmp'):
                self.src = set().union(*R)
            else:
                self.dst = R[0]
                self.src = set().union(*R[1:]) if len(R) > 1 else set()
        elif op.startswith('v_'):
            self.kind = 'valu'
            if base.startswith('v_permlane') or base == 'v_swap_b32':
                self.dst = R[0] | R[1]
                self.src = R[0] | R[1]
            elif base in ('v_add_co_u32', 'v_addc_co_u32', 'v_sub_co_u32'):
                self.dst = R[0] | R[1]
                self.src = set().union(*R[2:])
            else:
                self.dst = R[0]
                self.src = set().union(*R[1:]) if len(R) > 1 else set()
                if base in ('v_fmac_f32', 'v_dot2c_f32_bf16'):
                    self.src |= R[0]
                if base == 'v_cndmask_b32' and len(toks) == 3:
                    self.src |= {('s', 'vcc')}
            if '_dpp' in op or 'row_' in mods or 'quad_perm' in mods:
                self.dpp = True
                self.src |= R[0]
        else:
            raise ValueError('unknown instr: ' + text)

    def is_trans(self):
        return self.op.replace('_e32', '').replace('_e64', '') in TRANS

    def is_dot(self):
        return self.op.startswith('v_dot2')


def WAIT(*tags):
    return I('', wait=list(tags))


class Stream:
    def __init__(self):
        self.l = []

    def __call__(self, text, tag=None):
        for line in text.split('\n'):
            line = line.strip()
            if not line:
                continue
            self.l.append(I(line, tag=tag))
        return self

    def wait(self, *tags):
        self.l.append(WAIT(*tags))

    def add(self, items):
        if isinstance(items, Stream):
            items = items.l
        for it in items:
            if isinstance(it, str):
                self(it)
            else:
                self.l.append(it)


def resolve_waits(instrs, verbose=False, ahead=1):
    out = []
    vm = []
    lg = []
    smem = []

    def need(queue, pred):
        for idx in range(len(queue) - 1, -1, -1):
            if pred(queue[idx]):
                return len(queue) - 1 - idx
        return None

    for pos, ins in enumerate(instrs):
        nv = nl = None
        if ins.kind == 'wait':
            tags = set(ins.wait)
            if 'ALL' in tags:
                nv = 0 if vm else None
                nl = 0 if (lg or smem) else None
            else:
                if 'LGKM0' in tags and (lg or smem):
                    nl = 0
                if 'VM0' in tags and vm:
                    nv = 0
                a = need(vm, lambda e: e[1] in tags)
                if a is not None:
                    nv = a if nv is None else min(nv, a)
                a = need(lg, lambda e: e[1] in tags)
                if a is not None:
                    nl = a if nl is None else min(nl, a)
        elif ins.kind not in ('label', 'dir'):
            touch = ins.src | ins.dst
            if touch:
                nv = need(vm, lambda e: e[0] & touch)
                nl = need(lg, lambda e: e[0] & touch)
                if any(e & touch for e in smem):
                    nl = 0
                if ins.kind == 'mfma' and nl is not None and ahead:
                    cnt = 0
                    for nx in instrs[pos + 1:pos + 40]:
                        if nx.kind in ('label', 'wait') or nx.op == 's_barrier' or nx.op.startswith('s_cbranch'):
                            break
                        if nx.kind == 'mfma':
                            a = need(lg, lambda e: e[0] & nx.src)
                            if a is not None and a < nl:
                                if a >= 3:
                                    nl = a
                                cnt += 1
                                if cnt >= ahead:
                                    break
        if nv is not None or nl is not None:
            parts = []
            if nv is not None:
                nv = min(nv, 63)
                parts.append(f'vmcnt({nv})')
                del vm[:max(0, len(vm) - nv)]
            if nl is not None:
                nl = min(nl, 15)
                parts.append(f'lgkmcnt({nl})')
                del lg[:max(0, len(lg) - nl)]
                if nl == 0:
                    smem.clear()
            out.append(I('s_waitcnt ' + ' '.join(parts)))
        if ins.kind == 'wait':
            continue
        if ins.op == 's_waitcnt':
            m = re.search(r'vmcnt\((\d+)\)', ins.text)
            if m:
                del vm[:max(0, len(vm) - int(m.group(1)))]
            m = re.search(r'lgkmcnt\((\d+)\)', ins.text)
            if m:
                n = int(m.group(1))
                del lg[:max(0, len(lg) - n)]
                if n == 0:
                    smem.clear()
        out.append(ins)
        if ins.kind in ('vmem', 'dma'):
            vm.append((ins.dst, ins.tag))
            assert len(vm) <= 63 or True
        elif ins.kind == 'lds':
            lg.append((ins.dst, ins.tag))
        elif ins.kind == 'smem':
            if ins.op.startswith('s_load'):
                smem.append(ins.dst)
            else:
                smem.append(ins.dst)
    return out


def states(ins):
    if ins.kind in ('label', 'dir'):
        return 0
    if ins.op == 's_nop':
        return int(ins.ops[0]) + 1
    return 1


def vg(s):
    return {r for r in s if r[0] in 'va'}


def sg(s):
    return {r for r in s if r[0] == 's'}


def required(p, c):
    n = 0
    if p.kind == 'valu':
        w = vg(p.dst)
        if w:
            if c.kind == 'mfma' and (w & c.src):
                n = max(n, 2)
            if c.kind == 'valu':
                if c.dpp and (w & c.src):
                    n = max(n, 2)
                if c.op.startswith('v_permlane') and (w & c.src):
                    n = max(n, 2)
                if c.op.startswith('v_readlane') or c.op.startswith('v_readfirstlane'):
                    if w & c.src:
                        n = max(n, 1)
                if p.is_trans() and (w & c.src) and not c.is_trans():
                    n = max(n, 1)
                if p.is_trans() and (w & c.src) and c.is_trans():
                    n = max(n, 1)
            if p.is_trans() and c.kind in ('vmem', 'lds', 'dma') and (w & c.src):
                n = max(n, 1)
            if p.is_dot():
                if c.is_dot() and c.op == p.op:
                    ab = set()
                    for t in c.ops[1:3]:
                        ab |= regs_of(t)
                    if w & ab:
                        n = max(n, 3)
                elif w & (c.src | c.dst):
                    n = max(n, 3)
        ws = sg(p.dst)
        if ws:
            if c.kind == 'valu' and (ws & c.src):
                n = max(n, 2)
            if c.kind in ('vmem', 'dma') and (ws & c.src):
                n = max(n, 5)
            if c.kind in ('salu', 'smem') and (ws & c.src):
                n = max(n, 1)
            if c.op.startswith('s_cbranch_vcc') and ('s', 'vcc') in ws:
                n = max(n, 1)
    if p.kind == 'mfma':
        d = p.dst
        big = 12 if p.passes == 8 else 8
        if c.kind == 'mfma':
            ab = c.src - c.srcc
            if d & ab:
                n = max(n, big)
            if d & c.srcc:
                if not (c.srcc == d and c.passes == p.passes):
                    n = max(n, 10 if p.passes == 8 else 6)
            if (d & c.dst) and not (d & c.srcc):
                n = max(n, big)
        elif c.kind in ('valu', 'vmem', 'lds', 'dma'):
            if d & (c.src | c.dst):
                n = max(n, big)
            if c.kind == 'valu' and (p.srcc & c.dst):
                n = max(n, 7 if p.passes == 8 else 3)
    if p.kind == 'salu' and ('s', 'm0') in p.dst and c.kind == 'dma':
        n = max(n, 1)
    if p.kind == 'vmem' and p.wide:
        data = regs_of(p.ops[0]) if p.op.startswith('buffer') else regs_of(p.ops[1])
        if data & c.dst:
            n = max(n, 2 if c.kind == 'valu' else 1)
    return n


def insert_nops(instrs):
    out = []
    cnt = 0
    for c in instrs:
        if c.kind not in ('label', 'dir'):
            dist = 0
            add = 0
            for p in reversed(out):
                if dist >= 12:
                    break
                if p.kind in ('label', 'dir'):
                    continue
                r = required(p, c)
                if r > dist:
                    add = max(add, r - dist)
                dist += states(p)
            if add:
                out.append(I(f's_nop {add - 1}'))
                cnt += add
        out.append(c)
    return out, cnt


def render(instrs):
    lines = []
    for i in instrs:
        if i.kind in ('label', 'dir'):
            lines.append(i.text)
        else:
            lines.append('    ' + i.text)
    return '\n'.join(lines) + '\n'


def weave(mains, gaps):
    out = []
    out.extend(gaps.get(-1, []))
    for i, m in enumerate(mains):
        out.append(m)
        out.extend(gaps.get(i, []))
    return out


def spread(gaps, items, lo, hi):
    n = len(items)
    if n == 0:
        return
    span = hi - lo + 1
    for j, it in enumerate(items):
        g = lo + (j * span) // n
        gaps.setdefault(g, [])
        if isinstance(it, list):
            gaps[g].extend(it)
        else:
            gaps[g].append(it)


WIDEN = ('v_exp_f32', 'v_rcp_f32', 'v_rsq_f32', 'v_mov_b32', 'v_add_f32', 'v_sub_f32', 'v_mul_f32', 'v_fmac_f32',
         'v_lshlrev_b32', 'v_lshrrev_b32', 'v_and_b32', 'v_or_b32', 'v_xor_b32', 'v_add_u32', 'v_sub_u32',
         'v_subrev_u32', 'v_mul_u32_u24', 'v_min_u32', 'v_max_f32', 'v_cndmask_b32')


def instr_sizes(text):
    import subprocess, tempfile, os
    d = tempfile.mkdtemp()
    src, obj = os.path.join(d, 'a.s'), os.path.join(d, 'a.o')
    open(src, 'w').write(text)
    r = subprocess.run(['clang', '-x', 'assembler', '-target', 'amdgcn-amd-amdhsa', '-mcpu=gfx950', '-c', src, '-o', obj],
                       capture_output=True, text=True)
    assert r.returncode == 0, r.stderr[:3000]
    out = subprocess.run(['llvm-objdump', '-d', '--mcpu=gfx950', obj], capture_output=True, text=True).stdout
    sizes = []
    for line in out.splitlines():
        m = re.search(r'//\s*[0-9A-F]{12}:((?: [0-9A-F]{8})+)', line)
        if m:
            sizes.append(4 * len(m.group(1).split()))
    return sizes


def align_pass(instrs, sizes, thr=4):
    real = [i for i in instrs if i.kind not in ('label', 'dir')]
    assert len(real) == len(sizes), (len(real), len(sizes))
    size = {id(i): s for i, s in zip(real, sizes)}
    out = []
    off = 0
    nw = nn = 0
    for k, ins in enumerate(instrs):
        if ins.kind in ('label', 'dir'):
            out.append(ins)
            continue
        sz = size[id(ins)]
        if sz == 4 and off % 8 == 0:
            run = 0
            for nx in instrs[k + 1:]:
                if nx.kind in ('label', 'dir'):
                    continue
                if size[id(nx)] == 4:
                    break
                run += 1
            if run and (ins.op in WIDEN or (ins.kind == 'valu' and ins.op.startswith('v_cmp_'))):
                t = ins.text.replace(ins.op, ins.op + '_e64', 1)
                ins.text = t
                sz = 8
                nw += 1
            elif run >= thr and not ins.op.startswith('s_cbranch') and ins.op not in ('s_branch', 's_endpgm', 's_getpc_b64'):
                out.append(ins)
                out.append(I('s_nop 0'))
                off += 8
                nn += 1
                continue
        out.append(ins)
        off += sz
    return out, nw, nn


def cost_of(x):
    if x.kind in ('label', 'dir'):
        return 0
    if x.kind == 'wait':
        return 2
    if x.kind in ('vmem', 'dma', 'vmem_untracked'):
        return 12
    if x.kind in ('lds', 'lds_untracked'):
        return 10 if x.op.startswith('ds_write_b128') else 4
    if x.kind == 'valu' and (x.is_trans() or x.op.startswith('v_permlane')):
        return 8
    return 4


def relevel(mains, gaps, maxshift=4, minlead=None):
    n = len(mains)
    G = {g: list(gaps.get(g, [])) for g in range(-1, n)}
    home = {id(x): g for g in G for x in G[g]}

    def pinned(g):
        return any(x.kind == 'label' or x.op == 's_barrier' or x.op.startswith('s_cbranch') or x.op == 's_branch' or ('s', 'exec') in x.dst for x in G[g])

    def free(x, m):
        if x.kind == 'wait' or x.op.startswith('s_memrealtime') or x.op.startswith('s_memtime') or x.op.startswith('v_writelane'):
            return False
        return not ((x.src | x.dst) & (m.src | m.dst))

    def c(g):
        return sum(cost_of(x) for x in G[g])
    for _ in range(40):
        moved = 0
        for g in range(0, n):
            if not G[g] or pinned(g):
                continue
            if g + 1 < n and not pinned(g + 1):
                x = G[g][-1]
                if free(x, mains[g + 1]) and g + 1 - home[id(x)] <= maxshift and c(g + 1) + cost_of(x) < c(g):
                    G[g].pop()
                    G[g + 1].insert(0, x)
                    moved += 1
                    continue
            if g - 1 >= 0 and not pinned(g - 1):
                x = G[g][0]
                if free(x, mains[g]) and home[id(x)] - (g - 1) <= maxshift and c(g - 1) + cost_of(x) < c(g):
                    G[g].pop(0)
                    G[g - 1].append(x)
                    moved += 1
        if not moved:
            break
    return G
```

```python
import sys, os
sys.path.insert(0, os.path.dirname(os.path.abspath(__file__)))
from asmlib import *

NAME = 'recurrent_scan__ssm_conv_h3__swiglu_ffn__prompt'

WSBASE = 0x8000000
WSSIZE = 0x1000000
EPOCH = 0x0
FS = 7
FLAG_P = 0x2000
FLAG_T = 0x8000
FLAG_Y = 0x10000
FLAG_W = 0x3000
FLAG_H = 0xC0000
STATS = 0x40000
CSP = 0x48000
STAMP = 0x80000
UT = 0x100000
YT = 0x320000
RS = 4224
HH = 0x600000
WT = 0xD80000

SLOT = [0, 49152, 98304]
CV = 98304
CVCH = 21760
CVR = 16640
RED = 0
XS = 16384
YS = 32768
EXC = 49152
WS0 = 147456
SPW = 40960
CS1 = 159744
CS2 = 157696

sW, sXCD, sJ, sTAG, sT0 = 3, 4, 5, 6, 7
SRD_X, SRD_K, SRD_V, SRD_W, SRD_SSM, SRD_DN, SRD_OUT, SRD_WS = 36, 40, 44, 48, 52, 56, 60, 64
sA, sB, sROT = 68, 69, 70
sRB2, sDB, sC0 = 71, 72, 73
sT1, sT2, sT3, sT4 = 74, 75, 76, 77
sSPIN = 78
sM0W, sM0X, sMASK = 79, 80, 81
sSOW, sSOX = 82, 83
sHB = 84
sSTEP = 86
sWF, sWTS, sOWNT, sUY, sSIG = 93, 94, 95, 96, 97
sEXW = 8
sHL = 11
sSO2 = 12
sYS = 31
sH0, sH1 = 40, 41
sXM = 14
sYG = 16
sOWNY, sHST, sDV, sXB = 43, 44, 45, 46
sHD2, sDV2 = 100, 85
sCVB = 10


def srd(r):
    return f's[{r}:{r + 3}]'


class Opt:
    stamps = False
    spin = None
    tiny = None
    clk = 's_memrealtime'
    ld_x = ''
    ld_w = ''
    ld_kv = ''
    out_st = ''
    order = 'xr2'
    D = 5
    G = 3
    NB = 7
    NH = 12
    NH0 = 10
    npre = 2
    dmarate = 2
    g2st = False
    tfb = 2
    sfp = 154
    wfu = 4
    uept = 2
    plead = 30
    utile = 2
    wfend = 100
    wfbeg = 34
    wfet = 5
    finend = 38
    wdper = 13
    njit = 4
    wdrp = 14
    lvl = 3
    lvl1 = 1
    epr = 6
    tlb = -1
    slp = 8
    yf_gap = 67
    yb_gap = 170
    l2pf = 0
    fa_tile = 6
    fa_pos = 30
    g2rot = False
    hb_poll = 40
    hb_check = 62
    align = 4
    htest = False
    hstp = 'sc1'
    drain = False
    wsbase = 0x8000000
    cvcut = ''
    prelater = 40
    csbar = 32 * 7 + 10
    hcheck = 108
    g1cut = ''
    NH00 = 10
    yflag = 40
    xs = ()
    cvst = False
    warm = True
    ylead = 24
    ywr = 204
    g1st = ()
    sst = True
    ppoll = 32 * 6 - 2
    wtc = 3
    wtb = 3
    wtf = 2
    lat0 = 28
    wf6 = 14
    wf7 = 16
    wfe = 10
    ubar = 0
    mid = 100
    cvpre = 12
    cvoff = 22
    pcheck = 32 * 7 + 24
    g2cut = ''
    hld = 'sc1'
    hflag_gap = 30
    hpoll_gap = 72
    hpoll2_gap = 84
    spoll = 32 * 4 + 6


def gen(opt):
    stamps = []
    SP = [26, 28]

    def raw(text):
        it = I(text)
        it.src = set()
        it.dst = set()
        return it

    state = {'G': [None, 0], 'S': [None, 0]}

    def stamp(st, name, path='G'):
        if not opt.stamps:
            return
        if name not in stamps:
            stamps.append(name)
        idx = stamps.index(name)
        if idx == 0:
            st.add([raw(f'{opt.clk} s[98:99]')])
            state['G'] = [(78, 0), 0]
            state['S'] = [(78, 0), 0]
            return
        (preg, pidx), par = state[path]
        st.add([raw(f'v_writelane_b32 v2, s{preg}, {pidx}'), raw(f'{opt.clk} s[{SP[par]}:{SP[par] + 1}]')])
        state[path] = [(SP[par], idx), par ^ 1]

    def xst(name):
        st_ = Stream()
        if name in opt.xs:
            stamp(st_, name)
        return st_.l

    def L(text, tag=None):
        s = Stream()
        s(text, tag)
        return s.l

    def each(items):
        out = []
        for x in items:
            if out and (x.op.startswith('s_cselect') or x.op in ('s_addc_u32', 's_subb_u32')):
                out[-1].append(x)
            else:
                out.append([x])
        return out

    def mk_srd(r, p, size):
        return L(f's_mov_b32 s{r}, s{p}\ns_mov_b32 s{r + 1}, s{p + 1}\ns_mov_b32 s{r + 2}, {size}\ns_mov_b32 s{r + 3}, 0x20000')

    def untracked(items):
        for it in items:
            if it.kind == 'vmem':
                it.kind = 'vmem_untracked'
        return items

    def set_flag(addr_sreg, label=None, off=0):
        s = Stream()
        if label:
            s(f's_cmp_lg_u32 s{sW}, 0\ns_cbranch_scc1 {label}')
        s(f'''
        v_mov_b32 v10, s{addr_sreg}
        v_mov_b32 v11, s{sTAG}
        s_mov_b64 exec, 1
        buffer_store_dword v11, v10, {srd(SRD_WS)}, 0 offen offset:{off} sc1
        s_mov_b64 exec, -1
        ''')
        if label:
            s(f'{label}:')
            return untracked(s.l)
        return s.l

    def poll_issue(vaddr, vdst, tag=None):
        return L(f'buffer_load_dword v{vdst}, v{vaddr}, {srd(SRD_WS)}, 0 offen sc1', tag)

    def wave0_addr(v):
        return L(f's_cmp_eq_u32 s{sW}, 0\ns_cselect_b32 s{sT0}, 0, 0x80000000\nv_or_b32 v{v}, s{sT0}, v{v}')

    def poll_check(vaddr, vdst, name, wave0=False):
        e = Stream()
        if wave0:
            e.wait(name)
            e(f's_cmp_lg_u32 s{sW}, 0\ns_cbranch_scc1 L_{name}_ok')
        e(f'''
        v_cmp_ne_u32 vcc, s{sTAG}, v{vdst}
        s_cbranch_vccz L_{name}_ok
        s_mov_b32 s{sSPIN}, 0
L_{name}_spin:
        s_sleep {opt.slp}
        ''')
        e.add(untracked(poll_issue(vaddr, vdst)))
        w = L('s_waitcnt vmcnt(0)')
        w[0].op = 's_waitcnt_untracked'
        e.add(w)
        e(f'''
        v_cmp_ne_u32 vcc, s{sTAG}, v{vdst}
        s_add_u32 s{sSPIN}, s{sSPIN}, 1
        s_cmp_ge_u32 s{sSPIN}, 0x40000
        s_cbranch_scc1 L_{name}_ok
        s_cbranch_vccnz L_{name}_spin
L_{name}_ok:
        ''')
        return e.l

    P0 = Stream()
    e = P0
    e('s_cmp_ge_u32 s2, 256\ns_cbranch_scc1 L_end')
    stamp(e, 'start')
    e(f'''
    s_load_dwordx16 s[8:23], s[0:1], 0
    s_load_dwordx8 s[24:31], s[0:1], 64
    s_load_dwordx2 s[32:33], s[0:1], 96
    v_lshrrev_b32 v2, 6, v0
    v_and_b32 v1, 63, v0
    s_and_b32 s{sXCD}, s2, 7
    v_readfirstlane_b32 s{sW}, v2
    s_lshr_b32 s{sJ}, s2, 3
    v_lshrrev_b32 v3, 4, v1
    v_and_b32 v4, 15, v1
    v_lshrrev_b32 v5, 3, v1
    v_and_b32 v6, 7, v1
    v_lshrrev_b32 v7, 2, v4
    v_and_b32 v8, 3, v1
    v_lshlrev_b32 v122, 4, v1
    v_mov_b32 v16, 0
    s_lshr_b32 s{sT0}, s{sXCD}, 1
    s_and_b32 s{sT1}, s{sXCD}, 1
    s_and_b32 s{sT2}, s{sJ}, 3
    s_lshr_b32 s{sDB}, s{sJ}, 2
    s_lshl_b32 s{sB}, s{sT0}, 2
    s_add_u32 s{sB}, s{sB}, s{sT2}
    s_mul_i32 s{sA}, s{sT1}, 7
    s_add_u32 s{sA}, s{sA}, s{sDB}
    s_lshl_b32 s{sHB}, s2, 3
    s_lshl_b32 s{sT0}, s{sXCD}, 8
    s_lshl_b32 s{sT1}, s{sJ}, 3
    s_add_u32 s{sT0}, s{sT0}, s{sT1}
    s_lshl_b32 s{sT1}, s{sW}, 1
    s_add_u32 s{sHB}, s{sT0}, s{sT1}
    s_lshl_b32 s{sT4}, s{sHB}, 10
    ''')
    e(f'''
    s_add_u32 s{sROT}, s{sT2}, s{sDB}
    s_and_b32 s{sROT}, s{sROT}, 3
    s_and_b32 s{sT1}, s{sXCD}, 4
    ''')
    if opt.order == 'xor4':
        e(f's_add_u32 s{sROT}, s{sROT}, s{sT1}')
    elif opt.order in ('rot', 'xor8'):
        e(f's_lshl_b32 s{sROT}, s{sROT}, 1\ns_lshr_b32 s{sT1}, s{sT1}, 2\ns_add_u32 s{sROT}, s{sROT}, s{sT1}')
    elif opt.order == 'xr2':
        e(f's_and_b32 s{sROT}, s{sROT}, 1\ns_and_b32 s{sT1}, s{sXCD}, 6\ns_add_u32 s{sROT}, s{sROT}, s{sT1}')
    elif opt.order == 'xr1':
        e(f's_and_b32 s{sROT}, s{sXCD}, 6')
    elif opt.order == 'x2':
        e(f's_and_b32 s{sROT}, s{sROT}, 1')
    elif opt.order == 'none':
        e(f's_mov_b32 s{sROT}, 0')
    elif opt.order == 'xor2':
        e(f's_and_b32 s{sROT}, s{sROT}, 1\ns_add_u32 s{sROT}, s{sROT}, s{sT1}')
    e('s_waitcnt lgkmcnt(0)')
    if opt.stamps:
        e('s_mov_b32 s78, s98')
    e.add(mk_srd(SRD_X, 8, 0x200000))
    e(f'buffer_load_dwordx4 v[20:23], v122, {srd(SRD_X)}, s{sT4} offen')
    e(f'buffer_load_dwordx4 v[24:27], v122, {srd(SRD_X)}, s{sT4} offen offset:1024')
    e(f's_add_u32 s{SRD_WS}, s32, {opt.wsbase}\ns_addc_u32 s{SRD_WS + 1}, s33, 0\ns_mov_b32 s{SRD_WS + 2}, {WSSIZE}\ns_mov_b32 s{SRD_WS + 3}, 0x20000')
    e(f'buffer_load_dword v17, v16, {srd(SRD_WS)}, 0 offen sc1')
    e(f's_cmp_ge_u32 s{sJ}, 28\ns_cbranch_scc1 L_srole')

    def conv_scalar_loads():
        return L(f'''
        s_lshl_b32 s{sC0}, s{sXCD}, 6
        s_lshl_b32 s{sT0}, s{sJ}, 1
        s_add_u32 s{sC0}, s{sC0}, s{sT0}
        s_lshr_b32 s{sT0}, s{sW}, 1
        s_add_u32 s{sC0}, s{sC0}, s{sT0}
        s_lshl_b32 s{sT1}, s{sC0}, 12
        s_load_dwordx2 s[{sHD2}:{sHD2 + 1}], s[16:17], s{sT1}
        s_lshr_b32 s{sT0}, s{sC0}, 1
        s_lshl_b32 s{sT0}, s{sT0}, 2
        s_load_dword s{sDV2}, s[18:19], s{sT0}
        ''')

    def late_scalars():
        e = Stream()
        e.add(mk_srd(SRD_SSM, 16, 0x200000))
        e.add(mk_srd(SRD_OUT, 28, 0x200000))
        e(f'''
        s_lshl_b32 s{sRB2}, s{sXCD}, 2
        s_and_b32 s{sT1}, s{sJ}, 3
        s_add_u32 s{sRB2}, s{sRB2}, s{sT1}
        s_lshr_b32 s{sT0}, s{sW}, 1
        s_mul_i32 s{sCVB}, s{sT0}, {CVCH}
        s_add_u32 s{sCVB}, s{sCVB}, {CV}
        s_lshl_b32 s{sT1}, s{sC0}, 12
        s_and_b32 s{sT2}, s{sW}, 1
        s_lshl_b32 s{sT2}, s{sT2}, 11
        s_add_u32 s{sYS}, s{sT2}, s{sT1}
        s_mul_i32 s{sT1}, s{sC0}, {RS}
        s_add_u32 s{sUY}, s{sT2}, s{sT1}
        ''')
        e.add(own_flag_addr(sOWNT, FLAG_T, sT1))
        return e.l

    HV = [9, 18]
    VOUT, VST, VXD1, VXD2, VXR, VYG, VYS, VYT, VYP, VHP, VPP, VEW, VER, VRW_, VRR = 64, 65, 67, 76, 77, 78, 79, 80, 81, 82, 83, 95, 120, 121, 123

    def tail_setup():
        e = Stream()
        for k in range(7):
            e(f's_mov_b32 s{sSTEP + k}, {4096 * k}')
        e(f'''
        s_mul_i32 s{sHL}, s{sRB2}, {2 * 112 * 1024}
        s_mul_i32 s{sT1}, s{sW}, {28 * 1024}
        s_add_u32 s{sHL}, s{sHL}, s{sT1}
        s_add_u32 s{sHL}, s{sHL}, {HH}
        v_lshrrev_b32 v124, 1, v3
        v_lshlrev_b32 v124, 10, v124
        v_and_b32 v125, 1, v3
        v_lshl_add_u32 v124, v125, 9, v124
        v_lshl_add_u32 v124, v4, 4, v124
        v_add_u32 v{HV[0]}, s{sHL}, v124
        v_add_u32 v{HV[1]}, {112 * 1024}, v{HV[0]}
        s_mul_i32 s{sWF}, s{sDB}, {56 * 4096}
        s_mul_i32 s{sT1}, s{sW}, {14 * 4096}
        s_add_u32 s{sWF}, s{sWF}, s{sT1}
        s_add_u32 s{sWF}, s{sWF}, {WT}
        s_lshl_b32 s{sT0}, s{sRB2}, 16
        s_lshl_b32 s{sT1}, s{sDB}, 7
        s_add_u32 s{sT0}, s{sT0}, s{sT1}
        s_lshl_b32 s{sT1}, s{sW}, 14
        s_add_u32 s{sXB}, s{sT0}, s{sT1}
        s_lshl_b32 s{sT1}, s{sW}, 5
        s_add_u32 s{sT0}, s{sT0}, s{sT1}
        v_lshlrev_b32 v124, 10, v4
        v_lshl_add_u32 v124, v3, 3, v124
        v_add_u32 v{VOUT}, s{sT0}, v124
        s_lshl_b32 s{sT0}, s{sRB2}, 9
        s_add_u32 s{sT0}, s{sT0}, {STATS}
        v_lshl_add_u32 v{VST}, v4, 3, s{sT0}
        v_xor_b32 v124, v6, v5
        v_lshlrev_b32 v124, 4, v124
        v_lshl_add_u32 v{VXD1}, v5, 10, v124
        v_add_u32 v{VXD2}, 7168, v{VXD1}
        v_lshrrev_b32 v124, 1, v3
        v_lshl_add_u32 v124, s{sW}, 1, v124
        v_xor_b32 v124, v124, v6
        v_lshlrev_b32 v124, 4, v124
        v_lshl_add_u32 v124, v4, 7, v124
        v_lshl_add_u32 v124, v125, 3, v124
        v_add_u32 v{VXR}, {XS}, v124
        s_lshl_b32 s{sT0}, s{sDB}, 6
        s_lshl_b32 s{sT1}, s{sW}, 4
        s_add_u32 s{sT0}, s{sT0}, s{sT1}
        s_mul_i32 s{sT0}, s{sT0}, {RS}
        s_lshl_b32 s{sT1}, s{sRB2}, 7
        s_add_u32 s{sT0}, s{sT0}, s{sT1}
        s_add_u32 s{sYG}, s{sT0}, {YT}
        s_add_u32 s{sYG + 1}, s{sYG}, {8 * RS}
        v_mul_u32_u24 v124, {RS}, v5
        v_lshl_add_u32 v{VYG}, v6, 4, v124
        s_mul_i32 s{sT0}, s{sW}, 2560
        s_add_u32 s{sT0}, s{sT0}, {YS}
        v_mul_u32_u24 v124, 160, v5
        v_lshl_add_u32 v124, v6, 4, v124
        v_add_u32 v{VYS}, s{sT0}, v124
        v_lshl_add_u32 v124, v3, 2, v7
        v_mul_u32_u24 v124, 160, v124
        v_lshl_add_u32 v124, v8, 3, v124
        v_add_u32 v{VYT}, s{sT0}, v124
        s_cmp_eq_u32 s{sW}, 0
        s_cselect_b32 s{sT2}, 0, 0x80000000
        s_lshl_b32 s{sT0}, s{sDB}, {FS + 5}
        s_add_u32 s{sT0}, s{sT0}, {FLAG_Y}
        s_or_b32 s{sT0}, s{sT0}, s{sT2}
        v_and_b32 v124, 31, v1
        v_lshl_add_u32 v{VYP}, v124, {FS}, s{sT0}
        s_lshl_b32 s{sT0}, s{sRB2}, {FS + 6}
        s_add_u32 s{sT0}, s{sT0}, {FLAG_H}
        s_or_b32 s{sT0}, s{sT0}, s{sT2}
        v_min_u32 v124, 27, v1
        v_lshl_add_u32 v{VHP}, v124, {FS}, s{sT0}
        s_lshr_b32 s{sT0}, s{sXCD}, 2
        s_lshl_b32 s{sT0}, s{sT0}, {FS}
        s_add_u32 s{sT0}, s{sT0}, {FLAG_P}
        s_or_b32 s{sT0}, s{sT0}, s{sT2}
        v_lshl_add_u32 v{VPP}, v4, {FS + 1}, s{sT0}
        s_lshl_b32 s{sT0}, s{sW}, 12
        s_add_u32 s{sT1}, s{sT0}, {EXC}
        v_add_u32 v{VEW}, s{sT1}, v122
        v_xor_b32 v{VER}, 4096, v{VEW}
        s_add_u32 s{sT1}, s{sT0}, {RED}
        v_add_u32 v{VRR}, s{sT1}, v122
        s_lshl_b32 s{sT0}, s{sW}, 10
        s_add_u32 s{sT1}, s{sT0}, {RED}
        v_add_u32 v{VRW_}, s{sT1}, v122
        s_lshl_b32 s{sXM}, s{sW}, 11
        s_add_u32 s{sXM}, s{sXM}, {XS}
        s_lshl_b32 s{sT0}, s{sDV2}, 16
        s_and_b32 s{sT1}, s{sDV2}, 0xffff0000
        s_bitcmp1_b32 s{sC0}, 0
        s_cselect_b32 s{sDV}, s{sT1}, s{sT0}
        ''')
        e.add(own_flag_addr(sOWNY, FLAG_Y, sT1))
        return e.l

    def code_prefetch(lab):
        return L(f'''
        s_getpc_b64 s[34:35]
{lab}:
        s_sub_u32 s34, s34, {lab}-{NAME}_kernel
        s_subb_u32 s35, s35, 0
        s_lshl_b32 s{sT0}, s{sJ}, 2
        s_add_u32 s{sT0}, s{sT0}, s{sW}
        s_mul_i32 s{sT0}, s{sT0}, 384
        v_min_u32 v18, 2, v1
        v_lshl_add_u32 v18, v18, 7, s{sT0}
        v_min_u32 v18, L_codeend-{NAME}_kernel-4, v18
        global_load_dword v18, v18, s[34:35]
        ''')

    def row_stats():
        e = Stream()
        e('v_mov_b32 v12, 0x3f803f80')
        for k in range(4):
            for r in range(2):
                b = 20 + 4 * r + k
                e(f'v_dot2_f32_bf16 v{28 + r}, v{b}, v12, {"0" if k == 0 else f"v{28 + r}"}')
                e(f'v_dot2_f32_bf16 v{30 + r}, v{b}, v{b}, {"0" if k == 0 else f"v{30 + r}"}')
        e(f'''
        v_readfirstlane_b32 s{sTAG}, v17
        v_lshrrev_b32 v13, 5, v1
        v_add_u32 v13, s{sHB}, v13
        v_permlane32_swap_b32 v28, v29
        v_permlane32_swap_b32 v30, v31
        s_add_u32 s{sTAG}, s{sTAG}, 1
        v_add_f32 v28, v28, v29
        v_add_f32 v30, v30, v31
        v_lshlrev_b32 v13, 3, v13
        v_mov_b32 v29, v28
        v_mov_b32 v31, v30
        v_add_u32 v13, {STATS}, v13
        v_and_b32 v14, 31, v1
        v_permlane16_swap_b32 v28, v29
        v_permlane16_swap_b32 v30, v31
        v_cmp_eq_u32 vcc, 0, v14
        v_add_f32 v28, v28, v29
        v_add_f32 v30, v30, v31
        v_mov_b32 v14, 0x80000000
        v_cndmask_b32 v13, v14, v13, vcc
        ''')
        for sh in (8, 4, 2, 1):
            for r in (28, 30):
                e(f'v_add_f32_dpp v{r}, v{r}, v{r} row_ror:{sh} row_mask:0xf bank_mask:0xf')
        e(f'''
        v_mul_f32 v28, 0x3b000000, v28
        v_mul_f32 v30, 0x3b000000, v30
        v_fma_f32 v29, -v28, v28, v30
        v_max_f32 v29, 0, v29
        v_add_f32 v29, 0x3727c5ac, v29
        ''')
        e(f'buffer_store_dwordx2 v[28:29], v13, {srd(SRD_WS)}, 0 offen sc1', tag='sst')
        return e.l

    def own_flag_addr(dst, base, tmp):
        return L(f's_lshl_b32 s{dst}, s{sXCD}, {FS + 5}\ns_lshl_b32 s{tmp}, s{sJ}, {FS}\ns_add_u32 s{dst}, s{dst}, s{tmp}\ns_add_u32 s{dst}, s{dst}, {base}')

    def wt_flag_addr(vdst, vtmp):
        return L(f'''
        v_min_u32 v{vtmp}, 6, v6
        v_lshl_add_u32 v{vtmp}, v5, 3, v{vtmp}
        s_lshr_b32 s{sT0}, s{sDB}, 1
        s_lshl_b32 s{sT0}, s{sT0}, {FS}
        s_add_u32 s{sT0}, s{sT0}, {FLAG_T}
        v_lshl_add_u32 v{vdst}, v{vtmp}, {FS + 2}, s{sT0}
        ''')

    def wt_dma_setup():
        return mk_srd(SRD_DN, 26, 1792 * 1024) + L(f'''
        v_lshrrev_b32 v92, 1, v4
        v_xor_b32 v92, v92, v3
        v_lshlrev_b32 v92, 5, v92
        v_and_b32 v93, 1, v1
        v_lshl_add_u32 v92, v93, 4, v92
        v_lshl_add_u32 v92, v3, 10, v92
        s_mul_i32 s{sWTS}, s{sXCD}, 7
        s_add_u32 s{sWTS}, s{sWTS}, s{sDB}
        s_lshl_b32 s{sT0}, s{sWTS}, 15
        s_lshl_b32 s{sT1}, s{sW}, 13
        s_add_u32 s{sT0}, s{sT0}, s{sT1}
        s_and_b32 s{sT1}, s{sJ}, 3
        s_lshl_b32 s{sT1}, s{sT1}, 8
        s_add_u32 s{sT0}, s{sT0}, s{sT1}
        v_add_u32 v72, s{sT0}, v92
        v_xor_b32 v73, 128, v72
        v_add_u32 v73, 3072, v73
        s_lshl_b32 s{sT0}, s{sW}, 11
        s_add_u32 s{sSO2}, s{sT0}, {WS0}
        ''')

    def wt_dma():
        return L(f's_mov_b32 m0, s{sSO2}') + L(f'buffer_load_dwordx4 v72, {srd(SRD_DN)}, 0 offen lds\nbuffer_load_dwordx4 v73, {srd(SRD_DN)}, 0 offen offset:1024 lds', 'wtd')

    def wt_setup():
        return L(f'''
        v_lshrrev_b32 v92, 1, v3
        v_lshlrev_b32 v92, 4, v92
        v_and_b32 v93, 1, v3
        v_lshl_add_u32 v93, v93, 2, v7
        v_add_u32 v92, v92, v93
        v_lshlrev_b32 v92, 8, v92
        v_lshl_add_u32 v92, v8, 3, v92
        s_lshl_b32 s{sT0}, s{sW}, 1
        v_xor_b32 v93, s{sT0}, v93
        v_lshl_add_u32 v92, v93, 5, v92
        v_add_u32 v74, {WS0}, v92
        v_xor_b32 v75, 32, v74
        s_and_b32 s{sT0}, s{sJ}, 3
        s_lshl_b32 s{sT0}, s{sT0}, 1
        s_lshr_b32 s{sT1}, s{sW}, 1
        s_add_u32 s{sT0}, s{sT0}, s{sT1}
        s_mul_i32 s{sT0}, s{sT0}, 56
        s_add_u32 s{sWTS}, s{sWTS}, s{sT0}
        s_lshl_b32 s{sWTS}, s{sWTS}, 12
        s_and_b32 s{sT0}, s{sW}, 1
        s_lshl_b32 s{sT0}, s{sT0}, 11
        s_add_u32 s{sWTS}, s{sWTS}, s{sT0}
        s_add_u32 s{sWTS}, s{sWTS}, {WT}
        ''')

    def wt_reads():
        return [I(f'ds_read_b64_tr_b16 v[{52 + 4 * d + 2 * h}:{53 + 4 * d + 2 * h}], v{74 + d} offset:{2048 * h}') for d in range(2) for h in range(2)]

    def wt_stores():
        return [I(f'buffer_store_dwordx4 v[{52 + 4 * d}:{55 + 4 * d}], v122, {srd(SRD_WS)}, s{sWTS} offen offset:{1024 * d} sc1', tag='wts') for d in range(2)]

    def wf(i):
        out = [[I(f'buffer_load_dwordx4 a[{16 * i + 4 * dt}:{16 * i + 4 * dt + 3}], v122, {srd(SRD_WS)}, s{sWF} offen offset:{1024 * dt} sc1')] for dt in range(4)]
        out[3] += L(f's_add_u32 s{sWF}, s{sWF}, 4096')
        return out

    def cv_loads():
        e = Stream()
        for c in range(2):
            e(f'buffer_load_dwordx4 v[{32 + 8 * c}:{35 + 8 * c}], v122, {srd(SRD_SSM)}, s{sYS} offen offset:{1024 * c}')
            e(f'buffer_load_dwordx4 v[{36 + 8 * c}:{39 + 8 * c}], v122, {srd(SRD_SSM)}, s{sYS} offen offset:{1024 * c + 8}')
        return e.l

    def cv_prep():
        e = Stream()
        e(f'''
        s_and_b32 s{sT2}, s{sW}, 1
        s_lshl_b32 s{sT1}, s{sT2}, 11
        s_add_u32 s{sT1}, s{sT1}, s{sCVB}
        v_add_u32 v92, s{sT1}, v122
        v_mul_u32_u24 v93, 4160, v3
        v_lshl_add_u32 v93, v4, 1, v93
        v_add_u32 v93, s{sCVB}, v93
        v_add_u32 v94, s{sCVB}, v122
        v_add_u32 v123, v4, v3
        v_subrev_u32 v123, 16, v123
        v_lshlrev_b32 v124, 4, v123
        v_lshrrev_b64 v[66:67], v124, s[{sHD2}:{sHD2 + 1}]
        v_cmp_gt_i32 vcc, 0, v123
        v_cndmask_b32 v66, v66, 0, vcc
        v_add_u32 v123, 1, v4
        v_and_b32 v124, 3, v123
        v_mul_u32_u24 v124, 4160, v124
        v_and_b32 v123, 28, v123
        v_lshl_add_u32 v124, v123, 1, v124
        v_lshl_add_u32 v124, v3, 4, v124
        s_lshl_b32 s{sT1}, s{sT2}, 8
        s_add_u32 s{sT1}, s{sT1}, s{sCVB}
        v_add_u32 v70, s{sT1}, v124
        v_lshlrev_b32 v124, 5, v4
        v_lshlrev_b32 v125, 4, v3
        v_sub_u32 v125, v125, v124
        s_add_u32 s{sT1}, s{sT1}, {CVR + 480}
        v_add_u32 v71, s{sT1}, v125
        v_lshlrev_b32 v125, 3, v3
        v_add_u32 v125, v125, v124
        s_lshl_b32 s{sT1}, s{sT2}, 11
        s_sub_u32 s{sT1}, s{sCVB}, s{sT1}
        s_add_u32 s{sT1}, s{sT1}, {CVR + 4088 - 1536}
        v_sub_u32 v69, s{sT1}, v125
        v_and_b32 v125, 1, v3
        v_lshl_add_u32 v124, v125, 9, v124
        v_lshrrev_b32 v125, 1, v3
        v_lshl_add_u32 v68, v125, 4, v124
        ''')
        return e.l

    def cv_align():
        e = Stream()
        for c in range(2):
            L0, L1 = 32 + 8 * c, 36 + 8 * c
            t1, t3 = 48 + 8 * c, 52 + 8 * c
            w = [L0, L0 + 1, L0 + 2, L0 + 3, L1 + 2, L1 + 3]
            for n in range(4):
                e(f'v_alignbit_b32 v{t1 + n}, v{w[n + 1]}, v{w[n]}, 16')
            for n in range(4):
                e(f'v_alignbit_b32 v{t3 + n}, v{w[n + 2]}, v{w[n + 1]}, 16')
            e(f'v_mov_b32 v{L1 + 3}, v{L1 + 2}\nv_mov_b32 v{L1 + 2}, v{L0 + 3}\nv_mov_b32 v{L1 + 1}, v{L0 + 2}\nv_mov_b32 v{L1}, v{L0 + 1}')
        e('v_mov_b32 v12, 0\nv_mov_b32 v13, 0\nv_mov_b32 v14, 0\nv_mov_b32 v15, 0')
        return e.l

    def cv_writes_h():
        e = Stream()
        e(f'ds_write_b128 v94, v[12:15] offset:{CVR + 4096}', tag='cvw')
        e(f'ds_write_b16 v93, v66', tag='cvw')
        for c in range(2):
            for sg_, r in ((0, 32 + 8 * c), (2, 36 + 8 * c), (1, 48 + 8 * c), (3, 52 + 8 * c)):
                e(f'ds_write_b128 v92, v[{r}:{r + 3}] offset:{sg_ * 4160 + 32 + 1024 * c}', tag='cvw')
        return e.l

    def cv_writes_u():
        e = Stream()
        e(f'ds_write_b128 v92, a[192:195] offset:{CVR}', tag='cvw')
        e(f'ds_write_b128 v92, a[196:199] offset:{CVR + 1024}', tag='cvw')
        return e.l

    XXP = [84, 86, 88, 90]
    STP = [24, 26, 28, 30]

    def u_loads():
        e = Stream()
        e(f's_add_u32 s{sT4}, s{sUY}, {UT}')
        e(f'buffer_load_dwordx4 a[192:195], v122, {srd(SRD_WS)}, s{sT4} offen sc1')
        e(f'buffer_load_dwordx4 a[196:199], v122, {srd(SRD_WS)}, s{sT4} offen offset:1024 sc1')
        e(f's_add_u32 s{sYS}, s{sUY}, {YT}')
        return e.l

    CA = 32
    FR = [128, 192]

    def cv_reads(mu):
        f = FR[mu & 1]
        out = []
        for k in range(8):
            out.append(I(f'ds_read_b128 v[{f + 32 + 4 * k}:{f + 32 + 4 * k + 3}], v71 offset:{3584 - 512 * k + 64 * mu}'))
            out.append(I(f'ds_read_b64 v[{f + 4 * k}:{f + 4 * k + 1}], v70 offset:{512 * k + 64 * mu}'))
            out.append(I(f'ds_read_b64 v[{f + 4 * k + 2}:{f + 4 * k + 3}], v70 offset:{512 * k + 64 * mu + 8}'))
        return out

    G1 = Stream()
    e = G1
    HALF = sJ if opt.order == 'xr2' else sXCD
    VXD = 84
    VWDM = 88
    VRW = [96, 100]
    VRX = [112, 116]
    e(f'''
    s_lshl_b32 s{sM0X}, s{sW}, 12
    s_add_u32 s{sM0X}, s{sM0X}, 32768
    s_lshl_b32 s{sT0}, s{sB}, 17
    s_lshl_b32 s{sT1}, s{sW}, 15
    s_add_u32 s{sT0}, s{sT0}, s{sT1}
    v_xor_b32 v92, v6, v3
    v_lshlrev_b32 v92, 4, v92
    v_lshl_add_u32 v92, v5, 10, v92
    v_add_u32 v{VXD}, s{sT0}, v92
    v_xor_b32 v93, 64, v{VXD}
    v_add_u32 v{VXD + 1}, {7168}, v93
    v_add_u32 v{VXD + 2}, {2 * 7168}, v{VXD}
    v_add_u32 v{VXD + 3}, {3 * 7168}, v93
    ''')
    wsetup = L(f'''
    s_and_b32 s{sT0}, s{sW}, 1
    s_cmp_eq_u32 s{sT0}, 0
    s_cselect_b32 s{SRD_W}, s22, s24
    s_cselect_b32 s{SRD_W + 1}, s23, s25
    s_mov_b32 s{SRD_W + 2}, {512 * 3584}
    s_mov_b32 s{SRD_W + 3}, 0x20000
    v_lshrrev_b32 v92, 1, v4
    v_xor_b32 v92, v92, v3
    s_lshl_b32 s{sT1}, s{sT0}, 2
    v_xor_b32 v92, s{sT1}, v92
    v_lshlrev_b32 v92, 5, v92
    v_and_b32 v93, 1, v1
    v_lshl_add_u32 v92, v93, 4, v92
    v_mul_u32_u24 v93, 3584, v3
    v_add_u32 v92, v92, v93
    s_lshr_b32 s{sT1}, s{sW}, 1
    s_mul_i32 s{sT2}, s{sT1}, {16 * 3584}
    s_lshl_b32 s{sT4}, s{sA}, 8
    s_add_u32 s{sT2}, s{sT2}, s{sT4}
    v_add_u32 v{VWDM}, s{sT2}, v92
    v_add_u32 v{VWDM + 1}, {13312}, v{VWDM}
    v_add_u32 v{VWDM + 2}, {2 * 13312}, v{VWDM}
    v_add_u32 v{VWDM + 3}, {3 * 13312}, v{VWDM}
    s_lshl_b32 s{sM0W}, s{sT0}, 14
    s_lshl_b32 s{sT1}, s{sT1}, 12
    s_add_u32 s{sM0W}, s{sM0W}, s{sT1}
    s_bfe_u32 s{sT0}, s{HALF}, 0x10001
    s_mul_i32 s{sH0}, s{sT0}, {32 * 3584}
    s_lshl_b32 s{sH1}, s{sH0}, 1
    s_sub_u32 s{sH1}, {32 * 3584}, s{sH1}
    ''')

    def g1_dma(i):
        slot = SLOT[i % 3]
        out = []
        for n in range(12):
            s = Stream()
            if n == 0:
                if opt.order == 'rot':
                    s(f's_add_u32 s{sT3}, s{sROT}, {i}\ns_and_b32 s{sT3}, s{sT3}, 7')
                else:
                    s(f's_xor_b32 s{sT3}, s{sROT}, {i}')
                s(f's_add_u32 m0, s{sM0X}, {slot}' if slot else f's_mov_b32 m0, s{sM0X}')
                s(f's_lshl_b32 s{sSOX}, s{sT3}, 7')
            if n == 4:
                s(f's_add_u32 m0, s{sM0W}, {slot}' if slot else f's_mov_b32 m0, s{sM0W}')
                s(f's_mul_i32 s{sSOW}, s{sT3}, {64 * 3584}\ns_add_u32 s{sSOW}, s{sSOW}, s{sH0}')
            if n == 8:
                s(f's_add_u32 m0, s{sM0W}, {slot + 8192}')
                s(f's_add_u32 s{sSOW}, s{sSOW}, s{sH1}')
            tag = f'c{i}' if (i or n >= 8) else 'c0a'
            if n < 4:
                s(f'buffer_load_dwordx4 v{VXD + n}, {srd(SRD_X)}, s{sSOX} offen offset:{1024 * n} {opt.ld_x} lds', tag=tag)
            else:
                s(f'buffer_load_dwordx4 v{VWDM + (n & 3)}, {srd(SRD_W)}, s{sSOW} offen offset:{1024 * (n & 3)} {opt.ld_w} lds', tag=tag)
            out.append(s.l)
        return out

    d0 = g1_dma(0)
    for grp in d0[:4]:
        e.add(grp)
    e.add(wsetup)
    for grp in d0[4:8]:
        e.add(grp)
    e.add(code_prefetch('L_pcg'))
    e.add(conv_scalar_loads())
    e(f'''
    v_and_b32 v92, 1, v3
    v_lshrrev_b32 v93, 1, v3
    v_lshl_add_u32 v93, v93, 3, v7
    v_lshlrev_b32 v93, 8, v93
    v_lshl_add_u32 v93, v92, 14, v93
    v_lshl_add_u32 v93, v8, 3, v93
    v_lshlrev_b32 v92, 2, v92
    v_xor_b32 v92, v92, v7
    v_lshl_add_u32 v104, v92, 5, v93
    s_and_b32 s{sT0}, s{sW}, 2
    s_lshl_b32 s{sT0}, s{sT0}, 6
    v_xor_b32 v{VRW[0]}, s{sT0}, v104
    ''')
    for t in range(1, 4):
        e(f'v_xor_b32 v{VRW[0] + t}, {t << 5}, v{VRW[0]}')
    for t in range(4):
        e(f'v_add_u32 v{VRW[1] + t}, {SLOT[2]}, v{VRW[0] + t}')
    e(f'''
    v_and_b32 v92, 31, v1
    v_lshrrev_b32 v93, 1, v92
    v_and_b32 v93, 7, v93
    v_lshrrev_b32 v94, 5, v1
    v_xor_b32 v93, v93, v94
    v_lshlrev_b32 v93, 4, v93
    v_lshl_add_u32 v93, v92, 7, v93
    s_and_b32 s{sT0}, s{HALF}, 2
    s_lshl_b32 s{sT0}, s{sT0}, 5
    v_xor_b32 v93, s{sT0}, v93
    s_and_b32 s{sT0}, s{sW}, 1
    s_lshl_b32 s{sT0}, s{sT0}, 13
    s_add_u32 s{sT0}, s{sT0}, 32768
    v_add_u32 v{VRX[0]}, s{sT0}, v93
    ''')
    for ks in range(1, 4):
        e(f'v_xor_b32 v{VRX[0] + ks}, {ks << 5}, v{VRX[0]}')
    for ks in range(4):
        e(f'v_add_u32 v{VRX[1] + ks}, {SLOT[2]}, v{VRX[0] + ks}')
    CF = 160
    for t in range(4):
        e(f'v_accvgpr_write_b32 a{CF + 2 + 4 * t}, 0\nv_accvgpr_write_b32 a{CF + 3 + 4 * t}, 0')
    csum = L(f'''
    s_lshl_b32 s{sT0}, s{sW}, 6
    v_xor_b32 v105, s{sT0}, v104
    v_xor_b32 v106, 32, v105
    s_lshl_b32 s{sT1}, s{sA}, 4
    s_lshl_b32 s{sT2}, s{sROT}, 1
    s_add_u32 s{sT1}, s{sT1}, s{sT2}
    s_bfe_u32 s{sT2}, s{HALF}, 0x10001
    s_add_u32 s{sT1}, s{sT1}, s{sT2}
    s_lshl_b32 s{sT1}, s{sT1}, 10
    s_lshl_b32 s{sT0}, s{sW}, 8
    s_add_u32 s{sT1}, s{sT1}, s{sT0}
    s_add_u32 s{sT1}, s{sT1}, {CSP}
    v_lshl_add_u32 v107, v1, 2, s{sT1}
    ''')
    e.add(csum)
    e.add(wt_dma_setup())
    pre_later = late_scalars() + wt_setup() + cv_prep()
    npl = opt.prelater
    gl = each(pre_later)
    for grp in gl[:npl]:
        e.add(grp)
    stamp(e, 'issued')
    e.add(row_stats())
    stamp(e, 'stats')
    stream = [(g, -1) for g in d0[8:] + g1_dma(1) + g1_dma(2)]
    for c in range(3, 8):
        stream += [(g, 32 * (c - 2) - opt.D + 1) for g in g1_dma(c)]
    for grp, _ in stream[:4]:
        e.add(grp)
    e.add(wt_dma())
    for grp, _ in stream[4:4 + opt.npre]:
        e.add(grp)
    stream = stream[4 + opt.npre:]
    later = tail_setup()
    s = L(f'''
    s_and_b32 s{sT0}, s{sXCD}, 6
    s_bfe_u32 s{sT1}, s{sJ}, 0x10001
    s_add_u32 s{sT0}, s{sT0}, s{sT1}
    s_lshl_b32 s{sT0}, s{sT0}, {FS + 5}
    s_and_b32 s{sT1}, s{sJ}, 1
    s_lshl_b32 s{sT1}, s{sT1}, {FS + 4}
    s_add_u32 s{sT0}, s{sT0}, s{sT1}
    s_add_u32 s{sT0}, s{sT0}, {FLAG_T}
    v_lshl_add_u32 v20, v4, {FS}, s{sT0}
    s_and_b32 s{sT2}, s{sXCD}, 1
    s_lshl_b32 s{sT2}, s{sT2}, {FS + 5}
    s_lshl_b32 s{sT1}, s{sDB}, {FS + 2}
    s_add_u32 s{sT1}, s{sT1}, s{sT2}
    s_add_u32 s{sT1}, s{sT1}, {FLAG_T}
    v_lshlrev_b32 v21, {FS + 6}, v7
    v_lshl_add_u32 v21, v8, {FS}, v21
    v_add_u32 v21, s{sT1}, v21
    v_cmp_gt_u32 vcc, 16, v1
    v_cndmask_b32 v20, v21, v20, vcc
    v_and_b32 v22, 31, v1
    v_lshlrev_b32 v23, 3, v22
    s_and_b32 s{sT1}, s{sW}, 2
    s_lshl_b32 s{sT1}, s{sT1}, 9
    s_add_u32 s{sT1}, s{sT1}, {CS2}
    v_add_u32 v23, s{sT1}, v23
    s_lshl_b32 s{sT0}, s{sB}, 10
    s_and_b32 s{sT1}, s{sW}, 1
    s_lshl_b32 s{sT1}, s{sT1}, 9
    s_add_u32 s{sT0}, s{sT0}, s{sT1}
    s_add_u32 s{sT0}, s{sT0}, {STATS}
    v_lshl_add_u32 v22, v22, 3, s{sT0}
    s_lshl_b32 s{sT0}, s{sW}, 10
    s_add_u32 s{sT0}, s{sT0}, {CS1}
    v_add_u32 v16, s{sT0}, v122
    v_lshlrev_b32 v17, 2, v0
    v_lshlrev_b32 v19, 1, v17
    v_add_u32 v17, {CS1}, v17
    v_add_u32 v19, {CS2}, v19
    s_lshl_b32 s{sT0}, s{sA}, 14
    s_lshl_b32 s{sT1}, s{sW}, 12
    s_add_u32 s{sT0}, s{sT0}, s{sT1}
    s_add_u32 s{sH0 + 2}, s{sT0}, {CSP}
    ''')
    s += wave0_addr(20) + wt_flag_addr(72, 73) + wave0_addr(72)
    later = s + later
    s = L(f'''
    s_lshl_b32 s{sT0}, s{sB}, 1
    s_and_b32 s{sT1}, s{sW}, 1
    s_add_u32 s{sT0}, s{sT0}, s{sT1}
    s_lshl_b32 s{sT1}, s{sA}, 1
    s_lshr_b32 s{sT2}, s{sW}, 1
    s_add_u32 s{sT1}, s{sT1}, s{sT2}
    s_mul_i32 s{sT2}, s{sT0}, 224
    s_lshl_b32 s{sHB}, s{sT0}, 6
    s_add_u32 s{sHB}, s{sHB}, s{sT1}
    s_lshl_b32 s{sHB}, s{sHB}, {FS}
    s_add_u32 s{sHB}, s{sHB}, {FLAG_H}
    s_lshl_b32 s{sT1}, s{sT1}, 2
    s_add_u32 s{sT2}, s{sT2}, s{sT1}
    s_lshl_b32 s{sT2}, s{sT2}, 10
    s_add_u32 s{sHST}, s{sT2}, {HH}
    ''')
    later += s
    gl = gl[npl:] + each(later)
    for grp in gl[:opt.mid]:
        e.add(grp)
    gl = gl[opt.mid:]
    cs_rd = []
    for i_ in range(2):
        for k in range(4):
            cs_rd += L(f'ds_read_b64_tr_b16 v[{32 + 8 * i_ + 2 * k}:{33 + 8 * i_ + 2 * k}], v{105 + i_} offset:{(k >> 1) * 4096 + (k & 1) * 1024}')
    cs_m = []
    for k in range(8):
        for i_ in range(2):
            cs_m += L(f'v_dot2_f32_bf16 v{48 + i_}, v{32 + 8 * i_ + k}, v12, {"0" if k == 0 else f"v{48 + i_}"}')
    cs_m += L('v_permlane32_swap_b32 v48, v49\nv_add_f32 v48, v48, v49')
    cs_m += L(f'buffer_store_dword v48, v107, {srd(SRD_WS)}, 0 offen sc1', tag='sst')

    ACC = 128
    NB = opt.NB
    AF = 256 - 4 * NB - 24
    BF = 256 - 24
    assert AF >= 200
    mains = []
    reads = {}
    for i in range(8):
        slot = SLOT[i % 3]
        st = 1 if i % 3 == 2 else 0
        imm = 0 if st else slot
        rl = []
        for ks in range(4):
            bq = BF + 8 * ((4 * i + ks) % 3)
            m0_ = 32 * i + 8 * ks
            for tt in range(4):
                m = m0_ + 2 * tt
                aq = AF + 4 * ((m // 2) % NB)
                if tt == 0:
                    rl.append((I(f'ds_read_b128 a[{bq}:{bq + 3}], v{VRX[st] + ks} offset:{imm}', tag=f'r{i}'), m0_, 'B'))
                for h in range(2):
                    rl.append((I(f'ds_read_b64_tr_b16 a[{aq + 2 * h}:{aq + 2 * h + 1}], v{VRW[st] + tt} offset:{imm + ks * 4096 + h * 1024}', tag=f'r{i}'), m, 'A'))
                if tt == 0:
                    rl.append((I(f'ds_read_b128 a[{bq + 4}:{bq + 7}], v{VRX[st] + ks} offset:{imm + 4096}', tag=f'r{i}'), m0_ + 1, 'B'))
                for nt in range(2):
                    ac = ACC + 16 * (4 * nt + tt)
                    c = '0' if (i == 0 and ks == 0) else f'v[{ac}:{ac + 15}]'
                    mains.append(I(f'v_mfma_f32_32x32x16_bf16 v[{ac}:{ac + 15}], a[{aq}:{aq + 3}], a[{bq + 4 * nt}:{bq + 4 * nt + 3}], {c}'))
        reads[i] = rl
    gaps = {}
    D, G = opt.D, opt.G

    def put(g, items):
        gaps.setdefault(g, [])
        gaps[g].extend(items if isinstance(items, list) else [items])

    pre = Stream()
    pre.wait('c0a', 'LGKM0')
    pre('s_barrier')
    stamp(pre, 'slot0')
    put(-1, pre.l + cs_rd)
    put(16 - D, [WAIT('c0')] + L('s_barrier'))
    for i in range(8):
        lo = 32 * i - D
        hi = 32 * (i + 1) - D - G
        rl = reads[i]
        n = len(rl)
        for jx, (ins, m, kind) in enumerate(rl):
            g = max(-1, lo + (jx * (hi - lo + 1)) // n)
            if i == 0 and m >= 16:
                g = max(g, 16 - D)
            lim = (m - 2 * NB + 1) if kind == 'A' else ((m & ~7) - 24 + 7)
            g = max(g, lim)
            assert g < m, (i, jx, g, m)
            assert g <= 32 * (i + 1) - D - 1
            put(g, ins)
        if i < 7:
            g = 32 * (i + 1) - D
            gaps[g] = [WAIT(f'c{i + 1}', 'LGKM0')] + L('s_barrier') + gaps.get(g, [])
    put(-1, cs_m)
    g = 0
    for grp, lo in stream:
        g = max(g, lo)
        put(g, grp)
        g += opt.dmarate
    assert g <= 32 * 6 - D + 1, g
    b_ = 32 - D
    spread(gaps, wt_reads(), b_ + 1, b_ + 4)
    spread(gaps, wt_stores(), b_ + 9, b_ + 11)
    b_ = 32 * opt.tfb - D
    gaps[b_][0].wait.append('wts')
    put(b_ + 1, set_flag(sOWNT, 'L_tf'))
    spread(gaps, gl, opt.lat0, min(opt.sfp - 1, 32 * 5 - D - 4))
    EX = [84, 88, 104, 108]
    wfl = [x for i in range(14) for x in wf(i)]
    n6, n7, ne = opt.wf6, opt.wf6 + opt.wf7, opt.wfe
    spread(gaps, wfl[:n6], 32 * 6 - D + 7, 32 * 7 - D - 1)
    spread(gaps, wfl[n6:n7], 32 * 7 - D + 3, 32 * 8 - 1)
    spread(gaps, cv_writes_h(), 32 * 6 - D + 2, 32 * 7 - D - 4)
    spread(gaps, each(cv_loads()), 32 * 4 - D - 7, 32 * 4 - D - 1)
    put(opt.sfp, poll_issue(20, 21, 'sf') + poll_issue(72, 73, 'wf'))
    b5 = 32 * 6 - D
    s = L(f'buffer_load_dwordx2 v[26:27], v22, {srd(SRD_WS)}, 0 offen sc1\nbuffer_load_dwordx2 v[24:25], v22, {srd(SRD_WS)}, 0 offen offset:256 sc1')
    for i_ in range(4):
        s += L(f'buffer_load_dwordx4 v[{EX[i_]}:{EX[i_] + 3}], v122, {srd(SRD_WS)}, s{sH0 + 2} offen offset:{1024 * i_} sc1')
    gaps[b5] = poll_check(20, 21, 'sf', True) + poll_check(72, 73, 'wf', True) + gaps[b5][:2] + s[2:3] + gaps[b5][2:]
    for k_, x in enumerate(s[3:] + s[:2]):
        gaps[b5 + 1 + k_] = [x] + gaps.get(b5 + 1 + k_, [])
    spread(gaps, each(cv_align()), 32 * 5 - D + 2, 32 * 6 - D - 2)
    s = []
    for r in range(4):
        s += L(f'v_add_f32 v{EX[0] + r}, v{EX[0] + r}, v{EX[1] + r}\nv_add_f32 v{EX[2] + r}, v{EX[2] + r}, v{EX[3] + r}')
    for r in range(4):
        s += L(f'v_add_f32 v{EX[0] + r}, v{EX[0] + r}, v{EX[2] + r}')
    s += L(f'ds_write_b128 v16, v[{EX[0]}:{EX[0] + 3}]', 'cs1')
    bx = opt.csbar
    spread(gaps, each(s), bx - 12, bx - 4)
    gaps[bx] = [WAIT('cs1')] + L('s_barrier') + gaps.get(bx, [])
    s = []
    for sw in range(4):
        s += L(f'ds_read_b32 v{28 + sw}, v17 offset:{1024 * sw}')
    spread(gaps, each(s), bx, bx + 1)
    s = L('''
    v_add_f32 v28, v28, v29
    v_add_f32 v30, v30, v31
    v_add_f32 v28, v28, v30
    v_cvt_pk_bf16_f32 v30, v28, v28
    v_lshlrev_b32 v29, 16, v30
    v_sub_f32 v29, v28, v29
    v_cvt_pk_bf16_f32 v31, v29, v29
    ds_write_b64 v19, v[30:31]
    ''')
    spread(gaps, each(s), bx + 6, bx + 12)
    KC = [26, 24]
    BM = [108, 104]
    s = L(f'v_cmp_gt_u32 s[{sT1}:{sT2}], 32, v1')
    for nt in range(2):
        k, b = KC[nt], BM[nt]
        s += L(f'''
        v_sub_f32 v{b}, 0, v{k}
        v_rsq_f32 v{k}, v{k + 1}
        v_cvt_pk_bf16_f32 v{b + 1}, v{b}, v{b}
        v_mov_b32 v{b + 2}, 0
        v_lshlrev_b32 v{b + 1}, 16, v{b + 1}
        v_mul_f32 v{k}, 0xbfb8aa3b, v{k}
        v_sub_f32 v{b + 1}, v{b}, v{b + 1}
        v_mov_b32 v{b + 3}, 0
        v_cvt_pk_bf16_f32 v{b}, v{b}, v{b + 1}
        v_cndmask_b32 v{b}, 0, v{b}, s[{sT1}:{sT2}]
        v_mov_b32 v{b + 1}, v{b}
        ''')
    spread(gaps, each(s), bx - 3, 32 * 8 - 3)
    g = 32 * 8 - D
    gaps[g] = [WAIT('LGKM0')] + L('s_barrier') + gaps.get(g, [])
    if opt.ubar == 8:
        put(255 - opt.plead, poll_issue(VPP, 127, 'pf'))
    else:
        bu = {6: 32 * 7 - D, 7: g, 0: bx}[opt.ubar]
        put(bu - opt.plead, poll_issue(VPP, 127, 'pf'))
        gaps[bu] = poll_check(VPP, 127, 'pf', True) + gaps[bu][:2] + u_loads() + gaps[bu][2:]
    if opt.ubar == 6:
        spread(gaps, cv_writes_u(), g - 4, g - 3)
    spread(gaps, [I(f'ds_read_b64 a[{CF + 4 * t}:{CF + 4 * t + 1}], v23 offset:{256 * t}') for t in range(4)], g, g + 1)
    if opt.g1st:
        for i in range(1, 8):
            if i in opt.g1st:
                st_ = Stream()
                stamp(st_, f'it{i}')
                put(32 * i - 1, st_.l)
    put(32 * 7, L(f's_add_u32 s{sSOW}, s{sHST}, {112 * 1024}'))
    if opt.g1cut:
        for g in list(gaps):
            if g < 0:
                continue
            keep = []
            for x in gaps[g]:
                if 'vm' in opt.g1cut and x.kind == 'vmem' and x.op.startswith('buffer_load'):
                    continue
                if 'wd' in opt.g1cut and x.kind == 'dma' and x.tag.startswith('wd'):
                    continue
                if x.kind == 'vmem' and x.op.startswith('buffer_load'):
                    if 'ssm' in opt.g1cut and srd(SRD_SSM) in x.text:
                        continue
                    if 'xs' in opt.g1cut and (('v', 120) in x.src or ('v', 123) in x.src):
                        continue
                    if 'st' in opt.g1cut and (('v', 22) in x.src or ('s', sH0 + 2) in x.src or ('v', 20) in x.src):
                        continue
                if 'st' in opt.g1cut and x.op.startswith('s_cbranch_vccz') and 'L_sf' in x.text:
                    x = I(x.text.replace('s_cbranch_vccz', 's_branch'))
                if 'vm' in opt.g1cut and x.op.startswith('s_cbranch_vccz'):
                    x = I(x.text.replace('s_cbranch_vccz', 's_branch'))
                keep.append(x)
            gaps[g] = keep
    if opt.lvl1:
        gaps = relevel(mains, gaps, opt.lvl1)
    e.add(weave(mains, gaps))
    for t in range(8):
        b = BM[t >> 2]
        e(f'v_mfma_f32_32x32x16_bf16 v[{ACC + 16 * t}:{ACC + 16 * t + 15}], a[{CF + 4 * (t & 3)}:{CF + 4 * (t & 3) + 3}], v[{b}:{b + 3}], v[{ACC + 16 * t}:{ACC + 16 * t + 15}]')
    stamp(e, 'G1loop')
    for t in range(8):
        A = ACC + 16 * t
        ep = Stream()
        for p in range(4):
            ep(f'v_pk_mul_f32 v[{A + 8 + 2 * p}:{A + 9 + 2 * p}], v[{A + 2 * p}:{A + 2 * p + 1}], v[{A + 8 + 2 * p}:{A + 9 + 2 * p}]')
        for p in range(4):
            ep(f'v_pk_mul_f32 v[{A + 2 * p}:{A + 2 * p + 1}], v[{A + 2 * p}:{A + 2 * p + 1}], v[{KC[t >> 2]}:{KC[t >> 2] + 1}] op_sel_hi:[1,0]')
        for k in range(8):
            ep(f'v_exp_f32 v{A + k}, v{A + k}')
        for p in range(4):
            ep(f'v_pk_fma_f32 v[{A + 2 * p}:{A + 2 * p + 1}], v[{A + 2 * p}:{A + 2 * p + 1}], v[{KC[t >> 2]}:{KC[t >> 2] + 1}], v[{KC[t >> 2]}:{KC[t >> 2] + 1}] op_sel:[0,1,1] op_sel_hi:[1,1,1]')
        for k in range(8):
            ep(f'v_rcp_f32 v{A + k}, v{A + k}')
        for p in range(4):
            ep(f'v_pk_mul_f32 v[{A + 8 + 2 * p}:{A + 9 + 2 * p}], v[{A + 8 + 2 * p}:{A + 9 + 2 * p}], v[{A + 2 * p}:{A + 2 * p + 1}]')
        for p in range(4):
            ep(f'v_cvt_pk_bf16_f32 v{A + p}, v{A + 8 + 2 * p}, v{A + 9 + 2 * p}')
        ep(f'buffer_store_dwordx4 v[{A}:{A + 3}], v122, {srd(SRD_WS)}, s{sHST if t < 4 else sSOW} offen offset:{1024 * (t & 3)} {opt.hstp}', tag='hsa' if t < 4 else 'hst')
        g2 = {}
        st_ = ep.l.pop()
        if t:
            g2[3] = [pend]
        pend = st_
        if t < opt.wfet:
            spread(g2, wfl[n7 + (ne * t) // opt.wfet:n7 + (ne * (t + 1)) // opt.wfet], 10, 30)
        if t == opt.fa_tile:
            g2.setdefault(opt.fa_pos, []).extend([WAIT('hsa')] + set_flag(sHB))
        if t == opt.uept and opt.ubar == 8:
            g2.setdefault(1, []).extend(poll_check(VPP, 127, 'pf', True) + L('s_barrier') + u_loads())
        if t == opt.utile and opt.ubar != 6:
            spread(g2, cv_writes_u(), 8, 30)
        if t == 7:
            if opt.ubar != 6:
                g2[14] = [WAIT('cvw')] + L('s_barrier')
            spread(g2, cv_reads(0)[:opt.cvpre], 16, 33)
            g2.setdefault(35, []).append(pend)
        e.add(weave(ep.l, g2))
        if t < 6:
            e.add(xst(f'e{t}'))
    stamp(e, 'G1epi')
    if opt.drain:
        e.wait('hst')
        stamp(e, 'drain')
        if opt.htest:
            e.add(set_flag(sHB))
            e(f'v_min_u32 v126, 27, v1\nv_lshl_add_u32 v126, v126, {FS}, s{sFH}')
            e.add(poll_issue(126, 127) + poll_check(126, 127, 'ht'))
            stamp(e, 'hseen')

    T = Stream()
    e = T
    e('L_tail:')
    mains = []
    for mu in range(4):
        f = FR[mu & 1]
        for nt in range(8):
            for mp in range(nt + 1):
                c = '0' if (mu == 0 and mp == 0) else f'v[{CA + 4 * nt}:{CA + 4 * nt + 3}]'
                mains.append(I(f'v_mfma_f32_16x16x32_bf16 v[{CA + 4 * nt}:{CA + 4 * nt + 3}], v[{f + 4 * mp}:{f + 4 * mp + 3}], v[{f + 32 + 4 * (nt - mp)}:{f + 32 + 4 * (nt - mp) + 3}], {c}'))
    gaps = {}
    for mu in range(4):
        for jx, x in enumerate(cv_reads(mu)):
            if mu == 0 and jx < opt.cvpre:
                continue
            gx = 36 * mu - opt.cvoff + (3 * jx) // 2
            if mu == 0:
                gx = jx - opt.cvpre
            put(max(gx, 0), x)
    spread(gaps, wfl[n7 + ne:], opt.wfbeg, opt.wfend)
    put(opt.hflag_gap, [WAIT('hst')] + L(f's_add_u32 s{sHB}, s{sHB}, {32 << FS}') + set_flag(sHB))
    put(opt.hpoll_gap, poll_issue(VHP, 126, 'hf'))
    GA = [224, 32, 48, 32]
    XU, YY, XN, RT, OO, TT = 176, 96, 104, 192, 208, 240
    HR = 128
    NH = opt.NH

    def h_load(n):
        rho, i = divmod(n, 14)
        r = HR + 4 * (n % NH)
        return L(f'buffer_load_dwordx4 v[{r}:{r + 3}], v{HV[rho >> 1]}, {srd(SRD_WS)}, s{sSTEP + (i >> 1)} offen offset:{2048 * (i & 1) + 256 * (rho & 1)} {opt.hld}')
    if opt.cvst:
        for z in (36, 72, 108):
            st_ = Stream()
            stamp(st_, f'cv{z}')
            put(z - 1, st_.l)
    st_ = Stream()
    stamp(st_, 'hflag')
    put(opt.hcheck, poll_check(VHP, 126, 'hf', True) + L('s_barrier') + st_.l)
    spread(gaps, [h_load(n) for n in range(opt.NH00)], opt.hcheck + 1, 143)
    put(143, L(f'v_add_u32 v{VHP}, {32 << FS}, v{VHP}') + poll_issue(VHP, 126, 'hb'))
    if opt.cvcut:
        for g in list(gaps):
            keep = []
            for x in gaps[g]:
                if 'dma' in opt.cvcut and x.kind == 'dma':
                    continue
                if 'st' in opt.cvcut and x.kind == 'vmem' and ('v', 123) in x.src:
                    continue
                if 'hst' in opt.cvcut and x.kind == 'wait' and 'hst' in x.wait:
                    continue
                if 'wr' in opt.cvcut and x.kind == 'lds' and x.tag and x.tag.startswith('wr'):
                    continue
                keep.append(x)
            gaps[g] = keep
    if opt.lvl:
        gaps = relevel(mains, gaps, opt.lvl)
    e.add(weave(mains, gaps))
    stamp(e, 'cvmain')
    RX = 192
    ex1 = [I(f'ds_read_b64 v[{112 + 2 * k}:{113 + 2 * k}], v69 offset:{1536 - 512 * k}') for k in range(4)]
    ex2 = L(f's_bitcmp1_b32 s{sW}, 0\ns_cbranch_scc1 L_exb')
    ex2 += [I(f'ds_write_b128 v{VEW}, v[{CA + 16 + 4 * k}:{CA + 19 + 4 * k}] offset:{1024 * k}', tag='cx') for k in range(4)]
    ex2 += L('s_branch L_exj\nL_exb:')
    alt = [I(f'ds_write_b128 v{VEW}, v[{CA + 4 * k}:{CA + 3 + 4 * k}] offset:{1024 * k}') for k in range(4)]
    for x in alt:
        x.kind = 'lds_untracked'
    ex2 += alt + L('L_exj:')
    ex3 = [WAIT('cx')] + L('s_barrier') + xst('xbar')
    ex3 += [I(f'ds_read_b128 v[{RX + 4 * k}:{RX + 3 + 4 * k}], v{VER} offset:{1024 * k}', tag='cr') for k in range(4)]
    ex4 = L(f's_mov_b32 m0, s{sXM}')
    ex4 += L(f'buffer_load_dwordx4 v{VXD1}, {srd(SRD_X)}, s{sXB} offen lds\nbuffer_load_dwordx4 v{VXD2}, {srd(SRD_X)}, s{sXB} offen offset:1024 lds', tag='xd')
    st_ld = [I(f'buffer_load_dwordx2 v[{STP[rho]}:{STP[rho] + 1}], v{VST}, {srd(SRD_WS)}, 0 offen offset:{128 * rho} sc1') for rho in range(4)]
    ex5 = [WAIT('cr')] + L(f's_bitcmp1_b32 s{sW}, 0\ns_cbranch_scc1 L_adb')
    ex5 += [I(f'v_add_f32 v{CA + k}, v{CA + k}, v{RX + k}') for k in range(16)]
    ex5 += L('s_branch L_adj\nL_adb:')
    ex5 += [I(f'v_add_f32 v{CA + k}, v{CA + 16 + k}, v{RX + k}') for k in range(16)]
    ex5 += L('L_adj:')
    fin = Stream()
    for k in range(4):
        a = CA + 4 * k
        d0_, d1_ = 112 + 2 * k, 113 + 2 * k
        fin(f'''
        v_and_b32 v12, 0xffff0000, v{d1_}
        v_lshlrev_b32 v13, 16, v{d1_}
        v_and_b32 v14, 0xffff0000, v{d0_}
        v_lshlrev_b32 v15, 16, v{d0_}
        v_fmac_f32 v{a}, s{sDV}, v12
        v_fmac_f32 v{a + 1}, s{sDV}, v13
        v_fmac_f32 v{a + 2}, s{sDV}, v14
        v_fmac_f32 v{a + 3}, s{sDV}, v15
        v_cvt_pk_bf16_f32 v{96 + 2 * k}, v{a}, v{a + 1}
        v_cvt_pk_bf16_f32 v{97 + 2 * k}, v{a + 2}, v{a + 3}
        ''')
    for ip in range(2):
        b = 96 + 4 * ip
        fin(f'v_permlane16_swap_b32 v{b}, v{b + 2}')
        fin(f'v_permlane16_swap_b32 v{b + 1}, v{b + 3}')
    for ip in range(2):
        b = 96 + 4 * ip
        fin(f'buffer_store_dwordx4 v[{b}:{b + 3}], v68, {srd(SRD_WS)}, s{sYS} offen offset:{1024 * ip} sc1', tag='yst')
    mains = []
    for rho in range(4):
        for i in range(14):
            n = 14 * rho + i
            r = HR + 4 * (n % NH)
            for dt in range(4):
                a = GA[rho] + 4 * dt
                c = '0' if i == 0 else f'v[{a}:{a + 3}]'
                mains.append(I(f'v_mfma_f32_16x16x32_bf16 v[{a}:{a + 3}], a[{16 * i + 4 * dt}:{16 * i + 4 * dt + 3}], v[{r}:{r + 3}], {c}'))
    gaps = {}
    assert NH <= 12
    nxt = opt.NH00
    for step in range(56):
        k = 2 if nxt - step < NH - 1 else 1
        for z in range(k):
            if nxt < 56 and nxt - NH <= step:
                g_ = 4 * step + 1 + 2 * z if nxt - NH < step else 4 * step + 3
                if nxt >= 28:
                    g_ = max(g_, 68)
                put(g_, h_load(nxt))
                nxt += 1
    put(0, ex1[:2])
    put(1, ex1[2:])
    put(2, ex2)
    put(7, ex3)
    put(3, ex4)
    spread(gaps, st_ld, 40, 52)
    put(12, ex5)
    spread(gaps, each(fin.l), 13, opt.finend)
    def red_write(rho):
        return [I(f'ds_write_b128 v{VRW_}, v[{GA[rho] + 4 * dt}:{GA[rho] + 4 * dt + 3}] offset:{16384 * (rho & 1) + 4096 * dt}', tag=f'rw{rho}') for dt in range(4)]

    def red_read(rho):
        return [I(f'ds_read_b128 v[{RT + 4 * sw}:{RT + 4 * sw + 3}], v{VRR} offset:{16384 * (rho & 1) + 1024 * sw}') for sw in range(4)]

    def red_sum(pk):
        b, o = RT, OO
        if pk:
            return L(f'''
            v_pk_add_f32 v[{b}:{b + 1}], v[{b}:{b + 1}], v[{b + 4}:{b + 5}]
            v_pk_add_f32 v[{b + 2}:{b + 3}], v[{b + 2}:{b + 3}], v[{b + 6}:{b + 7}]
            v_pk_add_f32 v[{b + 8}:{b + 9}], v[{b + 8}:{b + 9}], v[{b + 12}:{b + 13}]
            v_pk_add_f32 v[{b + 10}:{b + 11}], v[{b + 10}:{b + 11}], v[{b + 14}:{b + 15}]
            v_pk_add_f32 v[{o}:{o + 1}], v[{b}:{b + 1}], v[{b + 8}:{b + 9}]
            v_pk_add_f32 v[{o + 2}:{o + 3}], v[{b + 2}:{b + 3}], v[{b + 10}:{b + 11}]
            ''')
        s = []
        for r in range(4):
            s += L(f'v_add_f32 v{b + r}, v{b + r}, v{b + 4 + r}')
        for r in range(4):
            s += L(f'v_add_f32 v{b + 8 + r}, v{b + 8 + r}, v{b + 12 + r}')
        for r in range(4):
            s += L(f'v_add_f32 v{o + r}, v{b + r}, v{b + 8 + r}')
        return s

    def xn_prep(rho):
        xu, xn, x0, x1, mu_, cc = XU + 4 * rho, XN + 4 * rho, XXP[rho], XXP[rho] + 1, STP[rho], STP[rho] + 1
        s = L(f'''
        v_rsq_f32 v{cc}, v{cc}
        v_lshlrev_b32 v{xu}, 16, v{x0}
        v_and_b32 v{xu + 1}, 0xffff0000, v{x0}
        v_lshlrev_b32 v{xu + 2}, 16, v{x1}
        v_and_b32 v{xu + 3}, 0xffff0000, v{x1}
        ''')
        for r in range(4):
            s += L(f'v_sub_f32 v{xn + r}, v{xu + r}, v{mu_}')
        for r in range(4):
            s += L(f'v_mul_f32 v{xn + r}, v{xn + r}, v{cc}')
        return s

    def gpart(rho):
        xn = XN + 4 * rho
        s = []
        for r in range(4):
            s += L(f'v_mul_f32 v{TT + r}, 0xbfb8aa3b, v{OO + r}')
        for r in range(4):
            s += L(f'v_exp_f32 v{TT + r}, v{TT + r}')
        for r in range(4):
            s += L(f'v_mul_f32 v{xn + r}, v{xn + r}, v{OO + r}')
        for r in range(4):
            s += L(f'v_add_f32 v{TT + r}, 1.0, v{TT + r}')
        for r in range(4):
            s += L(f'v_rcp_f32 v{TT + r}, v{TT + r}')
        for r in range(4):
            s += L(f'v_mul_f32 v{xn + r}, v{xn + r}, v{TT + r}')
        return s

    def y_unpack(rho, t):
        y0, y1 = YY + 2 * rho, YY + 2 * rho + 1
        return L(f'''
        v_lshlrev_b32 v{t}, 16, v{y0}
        v_and_b32 v{t + 1}, 0xffff0000, v{y0}
        v_lshlrev_b32 v{t + 2}, 16, v{y1}
        v_and_b32 v{t + 3}, 0xffff0000, v{y1}
        ''')

    def late(rho, t):
        xu, xn = XU + 4 * rho, XN + 4 * rho
        s = []
        for r in range(4):
            s += L(f'v_fmac_f32 v{xu + r}, v{xn + r}, v{t + r}')
        s += L(f'''
        v_cvt_pk_bf16_f32 v{xu}, v{xu}, v{xu + 1}
        v_cvt_pk_bf16_f32 v{xu + 1}, v{xu + 2}, v{xu + 3}
        ''')
        st = L(f's_mov_b32 s{sT0}, {16384 * rho}\nbuffer_store_dwordx2 v[{xu}:{xu + 1}], v{VOUT}, {srd(SRD_OUT)}, s{sT0} offen {opt.out_st}')
        return each(s) + [st]

    for rho in range(3):
        g = 56 * (rho + 1)
        spread(gaps, red_write(rho), g + 4, g + 7)
        if rho == 0:
            put(g + 11, poll_check(VHP, 126, 'hb', True) + ([WAIT('rw0', 'xd')] + L('s_barrier') if opt.yf_gap != 67 else
                [WAIT('rw0', 'xd', 'yst')] + L('s_barrier') + set_flag(sOWNY, 'L_yf')))
        else:
            put(g + 11, [WAIT(f'rw{rho}')] + L('s_barrier'))
        spread(gaps, red_read(rho), g + 12, g + 15)
        spread(gaps, each(red_sum(False) + (xn_prep(0) if rho == 0 else []) + gpart(rho)), g + 19, g + (55 if rho < 2 else 38))
    s = [I(f'ds_read_b64 v[{XXP[rho]}:{XXP[rho] + 1}], v{VXR} offset:{2048 * rho}') for rho in range(4)]
    spread(gaps, s, 56 + 12, 56 + 15)
    spread(gaps, each(xn_prep(1)), 100, 111)
    spread(gaps, each(xn_prep(2) + xn_prep(3)), 112, 167)
    if opt.yf_gap != 67:
        put(opt.yf_gap, [WAIT('yst')] + L('s_barrier') + set_flag(sOWNY, 'L_yf'))
    yb = opt.yb_gap
    put(yb - opt.ylead, poll_issue(VYP, 127, 'yf'))
    put(yb, poll_check(VYP, 127, 'yf', True) + L(f'''
    s_barrier
    buffer_load_dwordx4 v[244:247], v{VYG}, {srd(SRD_WS)}, s{sYG} offen sc1
    buffer_load_dwordx4 v[248:251], v{VYG}, {srd(SRD_WS)}, s{sYG + 1} offen sc1
    '''))
    yw = opt.ywr
    put(yw, L(f'ds_write_b128 v{VYS}, v[244:247]', tag='ys'))
    put(yw + 1, L(f'ds_write_b128 v{VYS}, v[248:251] offset:{8 * 160}', tag='ys'))
    put(yw + 4, WAIT('ys'))
    spread(gaps, [I(f'ds_read_b64_tr_b16 v[{YY + 2 * rho}:{YY + 2 * rho + 1}], v{VYT} offset:{32 * rho}') for rho in range(4)], yw + 4, yw + 5)
    work = []
    for rho in range(3):
        work += each(y_unpack(rho, 244 + 4 * (rho & 1))) + late(rho, 244 + 4 * (rho & 1))
    work += each(y_unpack(3, 252))
    spread(gaps, work, max(yw + 9, 168 + 38), 168 + 55)
    for z in (3, 15, 27, 39):
        put(z, xst(f'g{z}'))
    if opt.g2cut:
        for g in list(gaps):
            if 'valu' in opt.g2cut:
                gaps[g] = [x for x in gaps[g] if not (x.kind == 'valu' and g > 60 and not x.op.startswith('v_cmp') and not (x.dst & {('v', 10), ('v', 11), ('v', 30), ('v', 31), ('v', 252), ('v', 253), ('v', 254), ('v', 255)}))]
            if 'load' in opt.g2cut:
                gaps[g] = [x for x in gaps[g] if not (x.kind == 'vmem' and ('v', 9) in x.src)]
            if 'poll' in opt.g2cut:
                gaps[g] = [x for x in gaps[g] if not x.op.startswith('s_cbranch_vccnz')]
    if opt.g2st:
        for rho in range(3):
            st_ = Stream()
            stamp(st_, f'rt{rho}')
            put(56 * (rho + 1) - 1, st_.l)
            if rho == 0:
                st_ = Stream()
                stamp(st_, 'ybar')
                put(56 + 12, st_.l)
    if opt.lvl:
        gaps = relevel(mains, gaps, opt.lvl)
    e.add(weave(mains, gaps))
    stamp(e, 'G2main')
    e.add(red_write(3))
    e.wait('rw3')
    e('s_barrier')
    e.add(red_read(3))
    e.add(red_sum(True))
    e.add(gpart(3))
    for grp in late(3, 252):
        e.add(grp)
    if opt.stamps:
        stamp(e, 'end')
        e('s_waitcnt lgkmcnt(0)')
        k = stamps.index('end')
        e.add([raw(f'v_writelane_b32 v2, s{state["G"][0][0]}, {k}')])
        e(f'''
        s_lshl_b32 s{sT0}, s2, 2
        s_add_u32 s{sT0}, s{sT0}, s{sW}
        s_lshl_b32 s{sT0}, s{sT0}, 6
        s_add_u32 s{sT0}, s{sT0}, {STAMP}
        v_lshl_add_u32 v10, v1, 2, s{sT0}
        s_mov_b64 exec, 0xffff
        buffer_store_dword v2, v10, {srd(SRD_WS)}, 0 offen
        ''')
        if opt.spin:
            a, b, m, wg = opt.spin
            e(f'''
            s_cmp_lg_u32 s2, {wg}
            s_cbranch_scc1 L_end
            s_cmp_lg_u32 s{sW}, 0
            s_cbranch_scc1 L_end
            s_nop 4
            v_readlane_b32 s{sT0}, v2, {stamps.index(a)}
            v_readlane_b32 s{sT1}, v2, {stamps.index(b)}
            v_readlane_b32 s{sT2}, v2, {k}
            s_nop 4
            s_sub_u32 s{sT0}, s{sT1}, s{sT0}
            s_mul_i32 s{sT0}, s{sT0}, {m}
            s_min_u32 s{sT0}, s{sT0}, 100000
            s_add_u32 s{sT0}, s{sT0}, s{sT2}
L_dspin:
            s_memrealtime s[26:27]
            s_waitcnt lgkmcnt(0)
            s_sub_u32 s{sT1}, s26, s{sT0}
            s_cmp_lt_i32 s{sT1}, 0
            s_cbranch_scc1 L_dspin
            ''')
    e('L_end:')
    e('s_endpgm')

    S = Stream()
    e = S
    e('L_srole:')
    e.add(mk_srd(SRD_K, 10, 0x200000))
    e.add(mk_srd(SRD_V, 12, 0x200000))
    e(f'''
    s_sub_u32 s{sA}, s{sJ}, 28
    v_lshrrev_b32 v9, 1, v6
    v_and_b32 v10, 1, v3
    v_lshlrev_b32 v10, 1, v10
    v_xor_b32 v9, v9, v10
    v_lshlrev_b32 v9, 5, v9
    v_and_b32 v10, 1, v6
    v_lshl_add_u32 v9, v10, 4, v9
    v_lshl_add_u32 v9, v5, 10, v9
    s_lshl_b32 s{sSIG}, s{sXCD}, 2
    s_add_u32 s{sSIG}, s{sSIG}, s{sA}
    s_and_b32 s{sROT}, s{sSIG}, 1
    s_lshl_b32 s{sROT}, s{sROT}, 2
    s_add_u32 s{sROT}, s{sROT}, s{sW}
    s_lshl_b32 s{sT0}, s{sROT}, 7
    v_add_u32 v84, s{sT0}, v9
    s_lshr_b32 s{sT1}, s{sSIG}, 1
    s_lshl_b32 s{sSOX}, s{sT1}, 17
    s_sub_u32 s{sT4}, s{sSOX}, 8192
    s_cmp_eq_u32 s{sT1}, 0
    s_cselect_b32 s{sT4}, 0x80000000, s{sT4}
    v_add_u32 v86, s{sT4}, v84
    s_mul_i32 s{sM0X}, s{sW}, {SPW}
    s_mov_b32 m0, s{sM0X}
    s_mov_b32 s{sMASK}, 0xffff
    s_lshl_b32 s{sT1}, s{sROT}, 9
    v_lshl_add_u32 v13, v1, 3, s{sT1}
    ''')
    e('global_load_dwordx2 v[96:97], v13, s[14:15]')

    def kv_dma(u):
        out = []
        for which in 'kv':
            for n in (2 * u, 2 * u + 1):
                off = 1024 * (n + 1) if which == 'k' else 17408 + 1024 * (n & 7)
                out.append(L(f's_add_u32 m0, s{sM0X}, {off}\ns_add_u32 s{sT3}, s{sSOX}, {8192 * n}') +
                           L(f'buffer_load_dwordx4 v84, {srd(SRD_K if which == "k" else SRD_V)}, s{sT3} offen {opt.ld_kv} lds', tag=f'kv{u}'))
        return out
    e(f'buffer_load_dwordx4 v86, {srd(SRD_K)}, 0 offen {opt.ld_kv} lds', tag='kv0')
    for grp in kv_dma(0) + kv_dma(1):
        e.add(grp)
    e.add(code_prefetch('L_pcs'))
    e.add(conv_scalar_loads())
    e.add(late_scalars())
    e(f'''
    v_lshlrev_b32 v104, 7, v7
    v_lshl_add_u32 v104, v8, 3, v104
    v_and_b32 v105, 2, v7
    v_xor_b32 v105, v105, v3
    v_lshl_add_u32 v104, v105, 5, v104
    v_add_u32 v104, s{sM0X}, v104
    s_add_u32 s{sT0}, s{sM0X}, {17408 + 8192}
    v_mul_u32_u24 v105, 144, v1
    v_add_u32 v105, s{sT0}, v105
    v_mul_u32_u24 v106, 144, v5
    v_lshl_add_u32 v106, v6, 4, v106
    v_add_u32 v106, s{sT0}, v106
    v_mul_u32_u24 v107, {RS}, v5
    v_lshl_add_u32 v107, v6, 4, v107
    s_mul_i32 s{sT0}, s{sROT}, {64 * RS}
    s_lshr_b32 s{sT1}, s{sSOX}, 9
    s_sub_u32 s{sT0}, s{sT0}, s{sT1}
    s_add_u32 s{sB}, s{sT0}, {UT + 3968}
    ''')
    stamp(e, 'issued', 'S')
    e.add(row_stats())
    stamp(e, 'stats', 'S')
    WP = 108
    e(f'''
    v_alignbit_b32 v{WP}, v96, v96, 16
    v_alignbit_b32 v{WP + 1}, v97, v97, 16
    v_and_b32 v{WP + 2}, 0xffff, v96
    v_bfi_b32 v{WP + 3}, s{sMASK}, v97, v96
    v_and_b32 v{WP + 4}, 0xffff0000, v97
    ''')
    for grp in kv_dma(2):
        e.add(grp)

    def p_reads(u):
        b = 128 + 20 * (u & 1)
        s = [WAIT(f'kv{u}')]
        for n in range(5):
            s += L(f'ds_read_b64_tr_b16 v[{b + 2 * n}:{b + 2 * n + 1}], v104 offset:{(4 + 16 * u + 4 * n) * 128}')
        for n in range(4):
            s += L(f'ds_read_b64_tr_b16 v[{b + 10 + 2 * n}:{b + 11 + 2 * n}], v104 offset:{17408 + ((16 * u) % 64 + 4 * n) * 128}', tag=f'pv{u}')
        return s

    def p_math(u):
        b = 128 + 20 * (u & 1)
        K = lambda n: f'v{b + 2 + n}'
        w = WP
        s = Stream()
        for n in range(8):
            s(f'v_dot2_f32_bf16 v{33 + 2 * n}, {K(n)}, v{w}, 0')
            s(f'v_dot2_f32_bf16 v{32 + 2 * n}, {K(n)}, v{w + 2}, 0')
        for n in range(8):
            s(f'v_dot2_f32_bf16 v{33 + 2 * n}, {K(n - 1)}, v{w + 1}, v{33 + 2 * n}')
            s(f'v_dot2_f32_bf16 v{32 + 2 * n}, {K(n - 1)}, v{w + 3}, v{32 + 2 * n}')
        for n in range(8):
            s(f'v_dot2_f32_bf16 v{32 + 2 * n}, {K(n - 2)}, v{w + 4}, v{32 + 2 * n}')
        for n in range(8):
            s(f'v_lshlrev_b32 v{48 + 2 * n}, 16, v{b + 10 + n}')
            s(f'v_and_b32 v{49 + 2 * n}, 0xffff0000, v{b + 10 + n}')
        for n in range(8):
            s(f'v_pk_mul_f32 v[{32 + 2 * n}:{33 + 2 * n}], v[{32 + 2 * n}:{33 + 2 * n}], v[{48 + 2 * n}:{49 + 2 * n}]')
        for m in range(8):
            n = 7 - m
            s(f'v_cvt_pk_bf16_f32 v{64 + m}, v{33 + 2 * n}, v{32 + 2 * n}')
        s(f'ds_write_b128 v105, v[64:67] offset:{96 - 32 * (u & 3)}', tag=f'po{u}')
        s(f'ds_write_b128 v105, v[68:71] offset:{112 - 32 * (u & 3)}', tag=f'po{u}')
        return s.l

    def p_out_read(th):
        return [WAIT(f'po{4 * th + 3}')] + [I(f'ds_read_b128 v[{168 + 4 * n}:{171 + 4 * n}], v106 offset:{8 * 144 * n}') for n in range(8)]

    def p_out_store(th):
        return [L(f's_add_u32 s{sT0}, s{sB}, {n * 8 * RS - 128 * th}') +
                L(f'buffer_store_dwordx4 v[{168 + 4 * n}:{171 + 4 * n}], v107, {srd(SRD_WS)}, s{sT0} offen sc1', tag='ust') for n in range(8)]

    e.add(p_reads(0))
    for u in range(8):
        m = p_math(u)
        g = {}
        if u < 7:
            g[30] = p_reads(u + 1)
        if u + 3 < 8:
            d = kv_dma(u + 3)
            if u >= 1:
                d[2] = [WAIT(f'pv{u - 1}')] + d[2]
            spread(g, d, 0, 28)
        if u == 2:
            g.setdefault(-1, []).extend(L('s_barrier') + set_flag(sOWNT, 'L_stf'))
        if u == 4:
            g.setdefault(-1, []).extend(p_out_read(0))
            spread(g, p_out_store(0)[:4], 40, 70)
        if u == 5:
            spread(g, p_out_store(0)[4:], 0, 70)
        e.add(weave(m, g))
        if u == opt.tlb:
            for k in range(7):
                e(f's_mov_b32 s{sT0}, {0x200000 * k + 0x100000}\ns_load_dword s{sM0W}, s[{SRD_WS}:{SRD_WS + 1}], s{sT0}')
            e(f's_load_dword s{sM0W}, s[{SRD_OUT}:{SRD_OUT + 1}], 0\ns_load_dword s{sM0W}, s[{SRD_DN}:{SRD_DN + 1}], 0')
            e('s_waitcnt lgkmcnt(0)')
        if u in (0, 1, 3, 5, 7) and opt.sst:
            stamp(e, f'Su{u}', 'S')
    e.add(p_out_read(1))
    for grp in p_out_store(1):
        e.add(grp)
    e.add(cv_prep())
    e.add(tail_setup())
    e.wait('ust')
    e('s_barrier')
    e(f's_lshl_b32 s{sT0}, s{sSIG}, {FS}\ns_add_u32 s{sT0}, s{sT0}, {FLAG_P}')
    e.add(set_flag(sT0, 'L_spf'))
    stamp(e, 'slot0', 'S')
    e.add(cv_loads())
    e.add(wt_flag_addr(22, 23) + wave0_addr(22) + poll_issue(22, 23, 'wfs') + poll_issue(VPP, 127, 'pfs'))
    e.add(cv_align())
    e.add(cv_writes_h())
    e.add(poll_check(22, 23, 'wfs', True) + poll_check(VPP, 127, 'pfs', True) + L('s_barrier') + u_loads())
    stamp(e, 'G1loop', 'S')
    for grp in [x for i in range(14) for x in wf(i)][:n7 + ne]:
        e.add(grp)
    e.add(cv_writes_u())
    e(f'''
    s_cmp_lg_u32 s2, 224
    s_cbranch_scc1 L_noep
    s_cmp_lg_u32 s{sW}, 0
    s_cbranch_scc1 L_noep
    v_lshlrev_b32 v126, {FS}, v1
    v_add_u32 v126, {FLAG_T}, v126
    ''')
    for k in range(4):
        e.add(poll_issue(126, 127) + poll_check(126, 127, f'ep{k}'))
        e(f'v_add_u32 v126, {64 << FS}, v126')
    e(f's_mov_b32 s{sT0}, {EPOCH}')
    e.add(set_flag(sT0))
    e('L_noep:')
    e(f's_mov_b32 s{sHB}, 0x80000000')
    e('s_waitcnt vmcnt(0) lgkmcnt(0)')
    e('s_barrier')
    e.add(cv_reads(0)[:opt.cvpre])
    stamp(e, 'G1epi', 'S')
    if opt.drain:
        e('s_waitcnt lgkmcnt(0)')
        stamp(e, 'drain', 'S')
        if opt.htest:
            e('s_waitcnt lgkmcnt(0)')
            stamp(e, 'hseen', 'S')
    e('s_waitcnt vmcnt(0) lgkmcnt(0)')
    if opt.stamps:
        r = state['S'][0][0]
        e(f's_mov_b32 s{SP[0] + SP[1] - r}, s{r}')
    e('s_branch L_tail')

    def finish(lst):
        r = resolve_waits(lst)
        for it in r:
            if it.kind == 'vmem_untracked':
                it.kind = 'vmem'
            if it.kind == 'lds_untracked':
                it.kind = 'lds'
        return insert_nops(r)
    A, n1 = finish(P0.l + G1.l + T.l)
    mark = I('L_mark:')
    Bs, n2 = finish(P0.l + [mark] + S.l)
    Bs = Bs[Bs.index(mark) + 1:]
    allins = A + Bs
    if opt.align:
        pre_ = f'.amdgcn_target "amdgcn-amd-amdhsa--gfx950"\n.text\n{NAME}_kernel:\n'
        sizes = instr_sizes(pre_ + render(allins) + 'L_codeend:\n')
        allins, nw, nn = align_pass(allins, sizes, opt.align)
        n2 = (n2, nw, nn)
    body = render(allins) + 'L_codeend:\n'
    hdr = open(os.path.join(os.path.dirname(os.path.abspath(__file__)), 'header.txt')).read()
    if stamps:
        hdr = '; stamps: ' + ' '.join(stamps) + '\n' + hdr
    launch = '; @launch grid=(256,1,1) block=(256,1,1) lds=163840\n'
    txt = hdr + launch + f'''.amdgcn_target "amdgcn-amd-amdhsa--gfx950"
.text
.globl {NAME}_kernel
.p2align 8
.type {NAME}_kernel,@function
{NAME}_kernel:
''' + body + f'''.section .rodata,"a"
.p2align 6
.amdhsa_kernel {NAME}_kernel
  .amdhsa_next_free_vgpr 512
  .amdhsa_next_free_sgpr 102
  .amdhsa_accum_offset 256
  .amdhsa_group_segment_fixed_size 0
  .amdhsa_kernarg_size 104
  .amdhsa_user_sgpr_count 2
  .amdhsa_user_sgpr_kernarg_segment_ptr 1
  .amdhsa_system_sgpr_workgroup_id_x 1
.end_amdhsa_kernel
'''
    return txt, stamps, (len(A), len(Bs), n1, n2)


if __name__ == '__main__':
    opt = Opt()
    out = sys.argv[1] if len(sys.argv) > 1 else f'cdna_kernels/{NAME}.s'
    for a in sys.argv[2:]:
        k, v = a.split('=', 1)
        assert hasattr(opt, k), k
        setattr(opt, k, eval(v))
    txt, stamps, info = gen(opt)
    open(out, 'w').write(txt)
    print('wrote', out, 'instrs/nops', info, 'stamps', stamps)
```
